```python
import torch

def _softmax(x, axis=-1):
    return torch.softmax(x, dim=axis)
def _gelu(x):
    return torch.nn.functional.gelu(x, approximate="tanh")
def _silu(x):
    return torch.nn.functional.silu(x)
def _sigmoid(x):
    return torch.sigmoid(x)
def _layernorm(x, axis=-1, eps=1e-5):
    m = x.mean(dim=axis, keepdim=True)
    v = x.var(dim=axis, keepdim=True, unbiased=False)
    return (x - m) / torch.sqrt(v + eps)
def _scatter_add(tgt, idx, src, axis=0):
    return tgt.clone().index_add_(axis, idx, src)
def _segment_sum(src, seg, n):
    out = torch.zeros((n,) + src.shape[1:], dtype=src.dtype)
    return out.index_add_(0, seg, src)
def _pad(x, pw):
    flat = tuple(v for pair in reversed(pw) for v in pair)
    return torch.nn.functional.pad(x, flat)

kernel_name = 'parallel_sum__linear_attn_block__dense_activation_gelu__prompt'

def setup_inputs():

    _w = (lambda a: (lambda t: t.to(torch.bfloat16) if t.is_floating_point() else t)(torch.as_tensor(a)))
    def _A_setup():
        B, S, D = 1, 2048, 448
        return {
            "x": _w((lambda *s: torch.randn(*s, dtype=torch.bfloat16) * 0.05)(B, S, D)),
            "wqkv": _w((lambda *s: torch.randn(*s, dtype=torch.bfloat16) * 0.1)(D, 3 * D)),
            "wo": _w((lambda *s: torch.randn(*s, dtype=torch.bfloat16) * 0.05)(D, D)),
        }
    _A_in = _A_setup()

    def _B_setup():
        B, S, D, F = 1, 2048, 448, 1792
        return {
            "x": _w((lambda *s: torch.randn(*s, dtype=torch.bfloat16) * 0.05)(B, S, D)),
            "w1": _w((lambda *s: torch.randn(*s, dtype=torch.bfloat16) * 0.8)(D, F) * (D ** -0.5)),
            "b1": _w((lambda *s: torch.randn(*s, dtype=torch.bfloat16) * 12.8)(F) * 0.01),
            "w2": _w((lambda *s: torch.randn(*s, dtype=torch.bfloat16) * 0.2)(F, D) * (F ** -0.5)),
            "b2": _w((lambda *s: torch.randn(*s, dtype=torch.bfloat16) * 3.2)(D) * 0.01),
        }
    _B_in = _B_setup()

    return {
        "A_x": _A_in["x"],
        "A_wqkv": _A_in["wqkv"],
        "A_wo": _A_in["wo"],
        "B_x": _B_in["x"],
        "B_w1": _B_in["w1"],
        "B_b1": _B_in["b1"],
        "B_w2": _B_in["w2"],
        "B_b2": _B_in["b2"],
    }

def reference(A_x, A_wqkv, A_wo, B_x, B_w1, B_b1, B_w2, B_b2):
    def _A_ref(x, wqkv, wo):
        B, S, D = x.shape
        H = 16; Dh = D // H
        qkv = (lambda x, *d: x.permute(*d))((x @ wqkv).reshape(B, S, 3, H, Dh), 2, 0, 3, 1, 4)
        q, k, v = qkv[0], qkv[1], qkv[2]
        phi = lambda t: torch.where(t > 0, t + 1, torch.exp(t)) + 1e-6
        pq, pk = phi(q), phi(k)
        kv = torch.einsum("bhsd,bhse->bhde", pk, v)
        z = torch.einsum("bhsd->bhd", pk)
        num = torch.einsum("bhqd,bhde->bhqe", pq, kv)
        den = torch.einsum("bhqd,bhd->bhq", pq, z)[..., None] + 1e-6
        o = num / den
        return (lambda x, *d: x.permute(*d))(o, 0, 2, 1, 3).reshape(B, S, D) @ wo

    def _B_ref(x, w1, b1, w2, b2):
        h = torch.einsum("bsd,df->bsf", x, w1) + b1
        h = _gelu(h)
        return torch.einsum("bsf,fd->bsd", h, w2) + b2

    x = A_x
    xn = _layernorm(x, axis=-1)
    return x + _A_ref(xn, A_wqkv, A_wo) + _B_ref(xn, B_w1, B_b1, B_w2, B_b2)
```

```python
import re
import struct


def f32(x):
    return struct.unpack("<I", struct.pack("<f", x))[0]


def vr(a, n=1):
    return f"v{a}" if n == 1 else f"v[{a}:{a + n - 1}]"


def sr(a, n=1):
    return f"s{a}" if n == 1 else f"s[{a}:{a + n - 1}]"


class Prog:
    def __init__(self):
        self.lines = []
        self.vm = []
        self.lg = []

    def e(self, s):
        for l in s.split("\n"):
            l = l.strip()
            if l:
                self.lines.append(l)

    def label(self, name):
        self.lines.append(name + ":")

    def vmem(self, s, tag=None, ghost=False):
        self.e(s)
        self.vm.append((tag, ghost))

    def lds(self, s, tag=None):
        self.e(s)
        self.lg.append(tag)

    def _vm_n(self, tag):
        idx = [i for i, (t, _) in enumerate(self.vm) if t == tag]
        if not idx:
            return None
        i = idx[-1]
        n = sum(1 for (_, g) in self.vm[i + 1:] if not g)
        return i, min(n, 63)

    def _lg_n(self, tag):
        idx = [i for i, t in enumerate(self.lg) if t == tag]
        if not idx:
            return None
        i = idx[-1]
        return i, min(len(self.lg) - i - 1, 15)

    def wait(self, vm=None, lg=None, keep=False):
        parts = []
        vms = vm if isinstance(vm, list) else [vm]
        lgs = lg if isinstance(lg, list) else [lg]
        r = [x for x in (self._vm_n(t) for t in vms if t is not None) if x]
        if r:
            i, n = max(r)
            parts.append(f"vmcnt({n})")
            if not keep:
                self.vm = self.vm[i + 1:]
        r = [x for x in (self._lg_n(t) for t in lgs if t is not None) if x]
        if r:
            i, n = max(r)
            parts.append(f"lgkmcnt({n})")
            if not keep:
                self.lg = self.lg[i + 1:]
        if parts:
            self.e("s_waitcnt " + " ".join(parts))

    def wait_all(self, vm=False, lg=False):
        parts = []
        if vm:
            parts.append("vmcnt(0)")
            self.vm = []
        if lg:
            parts.append("lgkmcnt(0)")
            self.lg = []
        self.e("s_waitcnt " + " ".join(parts))


_REG = re.compile(r"\b([vs])(\d+)\b|\b([vs])\[(\d+):(\d+)\]|\b(vcc|exec|m0)\b")
TRANS = ("v_exp_f32", "v_rcp_f32", "v_rsq_f32", "v_sqrt_f32", "v_log_f32")


def regs_of(op):
    out = set()
    for m in _REG.finditer(op):
        if m.group(1):
            out.add((m.group(1), int(m.group(2))))
        elif m.group(3):
            for k in range(int(m.group(4)), int(m.group(5)) + 1):
                out.add((m.group(3), k))
        else:
            out.add((m.group(6), 0))
    return out


def parse(line):
    mn, _, rest = line.partition(" ")
    ops = [o.strip() for o in rest.split(",")] if rest else []
    R = [regs_of(o) for o in ops]
    allr = set().union(*R) if R else set()
    d = dict(mn=mn, kind="other", dst=set(), src=set(), C=set(), data=set(), wide=False)
    if mn.startswith("v_mfma"):
        d.update(kind="mfma", dst=R[0], src=R[1] | R[2], C=R[3])
    elif mn.startswith("v_"):
        d["kind"] = "valu"
        if mn.startswith("v_permlane"):
            d.update(dst=allr, src=allr)
        else:
            d.update(dst=R[0], src=set().union(*R[1:]) if len(R) > 1 else set())
            if mn.startswith(("v_dot2c", "v_fmac")):
                d["src"] |= R[0]
    elif mn.startswith(("buffer_", "global_")):
        d["kind"] = "vmem"
        if line.rstrip().endswith(" lds") or "_lds_" in mn:
            d.update(src=allr | {("m0", 0)})
        elif "store" in mn or "atomic" in mn:
            data = R[0] if mn.startswith("buffer_") else R[1]
            d.update(src=allr, data=data, wide=mn.endswith(("x3", "x4")))
        else:
            d.update(dst=R[0], src=set().union(*R[1:]))
    elif mn.startswith("ds_"):
        d["kind"] = "ds"
        if mn.startswith("ds_read"):
            d.update(dst=R[0], src=set().union(*R[1:]))
        else:
            d.update(src=allr)
    elif mn.startswith("s_") and not mn.startswith(("s_waitcnt", "s_nop", "s_barrier", "s_cbranch", "s_branch", "s_endpgm", "s_sleep", "s_setprio")):
        d["kind"] = "salu"
        if mn.startswith(("s_cmp", "s_bitcmp")):
            d.update(src=allr)
        else:
            d.update(dst=R[0], src=set().union(*R[1:]) if len(R) > 1 else set())
    return d


def need(p, c):
    n = 0
    V = lambda s: {r for r in s if r[0] == "v"}
    S = lambda s: {r for r in s if r[0] in ("s", "vcc")}
    if p["kind"] == "valu":
        if c["kind"] == "mfma" and V(p["dst"]) & (c["src"] | c["C"]):
            n = max(n, 3 if p["mn"].startswith("v_dot2") else 2)
        if c["kind"] == "valu":
            if p["mn"].startswith(TRANS) and V(p["dst"]) & c["src"]:
                n = max(n, 1)
            if c["mn"].startswith("v_permlane") and V(p["dst"]) & c["src"]:
                n = max(n, 2)
            if c["mn"].startswith(("v_readfirstlane", "v_readlane")) and V(p["dst"]) & c["src"]:
                n = max(n, 1)
            if "dpp" in c["mn"] and V(p["dst"]) & c["src"]:
                n = max(n, 2)
            if S(p["dst"]) & c["src"]:
                n = max(n, 2)
        if p["mn"].startswith("v_dot2") and V(p["dst"]) & (c["src"] | c["dst"]):
            same_acc = c["mn"] == p["mn"] and p["mn"].startswith("v_dot2c") and c["dst"] == p["dst"]
            if not same_acc:
                n = max(n, 3)
        if c["kind"] == "vmem" and S(p["dst"]) & c["src"]:
            n = max(n, 5)
        if c["kind"] == "salu" and S(p["dst"]) & c["src"]:
            n = max(n, 2)
    if p["kind"] == "mfma":
        if c["kind"] == "mfma":
            if p["dst"] & c["src"]:
                n = max(n, 12)
            if p["dst"] & c["C"] and p["dst"] != c["C"]:
                n = max(n, 10)
            if p["dst"] & c["dst"] and p["dst"] != c["C"]:
                n = max(n, 12)
        elif c["kind"] in ("valu", "vmem", "ds"):
            if p["dst"] & (c["src"] | c["dst"]):
                n = max(n, 12)
            if p["C"] & c["dst"]:
                n = max(n, 7)
    if p["kind"] == "vmem" and p["wide"] and c["kind"] in ("valu", "mfma", "vmem", "ds") and p["data"] & c["dst"]:
        n = max(n, 2)
    if p["kind"] == "salu" and ("m0", 0) in p["dst"] and c["kind"] == "vmem" and ("m0", 0) in c["src"]:
        n = max(n, 1)
    return n


def pad(lines):
    out = []
    hist = []
    pending = {}
    npad = 0

    def worst(h, c):
        dist, w = 0, 0
        for p, st in reversed(h):
            if dist >= 12:
                break
            w = max(w, need(p, c) - dist)
            dist += st
        return w

    alts = []
    for l in lines:
        if l.startswith(".") or l.startswith(";"):
            out.append(l)
            continue
        if l.endswith(":"):
            alts += [list(h) for h in pending.pop(l[:-1], [])]
            out.append(l)
            continue
        c = parse(l)
        w = max([worst(hist, c)] + [worst(h, c) for h in alts])
        if w > 0:
            out.append(f"s_nop {w - 1}")
            npad += 1
            nop = (parse("s_nop 0"), w)
            hist.append(nop)
            for h in alts:
                h.append(nop)
        st = 1
        if c["mn"] == "s_nop":
            st = int(l.split()[1]) + 1
        hist.append((c, st))
        for h in alts:
            h.append((c, st))
        hist = hist[-14:]
        alts = [h for h in alts if h[-14:] != hist and len(h) < 40]
        out.append(l)
        if c["mn"].startswith(("s_cbranch", "s_branch")):
            tgt = l.split()[1]
            pending.setdefault(tgt, []).append(list(hist))
            for h in alts:
                pending[tgt].append(list(h))
            if c["mn"] == "s_branch":
                hist, alts = [], []
        if c["mn"] == "s_endpgm":
            hist, alts = [], []
    return out, npad
```

```python
import math
import sys
from asmlib import Prog, f32, vr, sr, pad

NAME = "parallel_sum__linear_attn_block__dense_activation_gelu__prompt"
OPT = dict(stamps=0, la=5, p2la=6, exact_r=0, rot=1, codepf=1)

H_OFF, PQ_OFF, M_OFF, KV_OFF, Z_OFF, FLAG_OFF, STAMP_OFF, WS_SZ = (
    0x0, 0x700000, 0x900000, 0x980000, 0xA80000, 0xA90000, 0xB00000, 0xC00000)
NRING = 15
def slot(i): return 8192 + 8192 * i
XBASE = slot(5)
HO = slot(15)
CNT_OFF = 1024
GA = 2.0 * math.sqrt(2.0 / math.pi) * math.log2(math.e)
GS = (GA * 0.044715) ** (1.0 / 3.0)
LOG2E = math.log2(math.e)
sWAVE, sW, sR, sU, sI = 3, 4, 5, 6, 7
X, WA, WB, WS, OUT, DBG, BIAS = (sr(a, 4) for a in (8, 12, 16, 20, 24, 28, 32))
sKL, sRHO, sT, sA, sB, sC, sFLAG, sSPIN = 58, 65, 66, 67, 68, 69, 70, 71
sK0, sK1, sK2 = 72, 73, 74
sM0W = 75
sP = 36
_uid = [0]


def uid(s):
    _uid[0] += 1
    return f"L{s}{_uid[0]}"


def srd(p, a, ptr, size):
    p.e(f"s_mov_b32 s{a}, s{ptr}\ns_mov_b32 s{a+1}, s{ptr+1}\ns_mov_b32 s{a+2}, {size:#x}\ns_mov_b32 s{a+3}, 0x20000")


def stamp(p, k):
    if OPT["stamps"]:
        p.e(f"s_memtime s[{80+2*k}:{81+2*k}]")


def finish(p):
    if OPT["stamps"]:
        stamp(p, 9)
        p.e("s_waitcnt lgkmcnt(0)")
        p.e(f"s_lshl_b32 s{sA}, s2, 3\ns_add_u32 s{sA}, s{sA}, s{sWAVE}\ns_lshl_b32 s{sA}, s{sA}, 6\ns_add_u32 s{sA}, s{sA}, {STAMP_OFF:#x}")
        p.e("s_mov_b64 exec, 1")
        for k in range(11):
            p.e(f"v_mov_b32 v2, s{80+2*k}\nbuffer_store_dword v2, off, {WS}, s{sA} offset:{4*k}\ns_nop 1")
    p.e("s_endpgm")


def kl_table(p, mul, base=None):
    for g in range(7):
        p.e(f"s_add_u32 s{sA}, s{sRHO}, {g}\ns_cmp_ge_u32 s{sA}, 7\ns_cselect_b32 s{sB}, 7, 0\ns_sub_u32 s{sA}, s{sA}, s{sB}")
        p.e(f"s_mul_i32 s{sKL+g}, s{sA}, {mul}")
        if base is not None:
            p.e(f"s_add_u32 s{sKL+g}, s{sKL+g}, s{base}")


def flag_store(p, vtmp, val, imm, ghost=False):
    p.e(f"v_mov_b32 v{vtmp}, {val}\ns_mov_b64 exec, 1")
    p.vmem(f"buffer_store_dword v{vtmp}, off, {WS}, s{sFLAG} offset:{imm} sc1", "flag", ghost)
    p.e("s_mov_b64 exec, -1")


class Gate:
    def __init__(self, vd, va, rs, soff, imm, want):
        self.vd, self.want = vd, want
        self.ld = f"buffer_load_dword v{vd}, v{va}, {rs}, {soff} offen offset:{imm} sc1"
        self.tag = uid("gate")

    def issue(self, p):
        p.vmem(self.ld, self.tag)

    def check(self, p):
        p.wait(vm=self.tag)
        again, ok = uid("again"), uid("ok")
        p.label(again)
        p.e(f"v_cmp_le_u32 vcc, {self.want}, v{self.vd}\ns_cmp_eq_u64 vcc, exec\ns_cbranch_scc1 {ok}")
        p.e(f"s_cmp_eq_u32 s{sSPIN}, 0\ns_cbranch_scc1 {ok}\ns_sub_u32 s{sSPIN}, s{sSPIN}, 1")
        p.e(f"{self.ld}\ns_waitcnt vmcnt(0)\ns_branch {again}")
        p.label(ok)


def gelu_ops(vin, n, vt, vout):
    ops = []
    for g in range(0, n, 4):
        w = [vin + g + k for k in range(4)]
        t = [vt + k for k in range(4)]
        ops += [(f"v_fma_f32 v{t[k]}, -v{w[k]}, v{w[k]}, s{sK0}", 4, None) for k in range(4)]
        ops += [(f"v_mul_f32 v{t[k]}, v{w[k]}, v{t[k]}", 4, None) for k in range(4)]
        ops += [(f"v_exp_f32 v{t[k]}, v{t[k]}", 8, None) for k in range(4)]
        ops += [(f"v_add_f32 v{t[k]}, 1.0, v{t[k]}", 4, None) for k in range(4)]
        ops += [(f"v_rcp_f32 v{t[k]}, v{t[k]}", 8, None) for k in range(4)]
        ops += [(f"v_mul_f32 v{t[k]}, v{w[k]}, v{t[k]}", 4, None) for k in range(4)]
        ops += [(f"v_cvt_pk_bf16_f32 v{vout + g//2 + k}, v{t[2*k]}, v{t[2*k+1]}", 4, g // 2 + k) for k in range(2)]
    return ops


def phi_ops(vin, n, vt):
    ops = []
    for g in range(0, n, 4):
        w = [vin + g + k for k in range(4)]
        t = [vt + k for k in range(4)]
        ops += [(f"v_fma_f32 v{t[k]}, v{w[k]}, s{sK0}, v{vt+4}", 4, None) for k in range(4)]
        ops += [(f"v_exp_f32 v{t[k]}, v{t[k]} clamp", 8, None) for k in range(4)]
        ops += [(f"v_max_f32 v{w[k]}, s{sK1}, v{w[k]}", 4, None) for k in range(4)]
        ops += [(f"v_add_f32 v{w[k]}, v{w[k]}, v{t[k]}", 4, None) for k in range(4)]
    return ops


def phi_consts(p, vt):
    p.e(f"s_mov_b32 s{sK0}, {f32(LOG2E):#x}\ns_mov_b32 s{sK1}, {f32(1e-6):#x}\nv_mov_b32 v{vt+4}, {f32(-1e-6*LOG2E):#x}")


def mfma(d, a, b, c):
    return f"v_mfma_f32_32x32x16_bf16 {vr(d,16)}, {vr(a,4)}, {vr(b,4)}, {c}"


def tr_lane_addr(p, vd, vt, rowmul, colbyte, swz):
    p.e(f"""v_lshrrev_b32 v{vt}, 5, v0
v_mul_u32_u24 v{vt}, {rowmul}, v{vt}
v_bfe_u32 v{vt+1}, v0, 2, 2
v_add_u32 v{vt}, v{vt}, v{vt+1}
v_lshlrev_b32 v{vt}, {7 if swz else 6}, v{vt}
v_bfe_u32 v{vt+1}, v0, 4, 1
v_lshlrev_b32 v{vt+1}, 5, v{vt+1}
v_and_b32 v{vd}, 3, v0
v_lshl_add_u32 v{vd}, v{vd}, 3, v{vt+1}""")
    if colbyte:
        p.e(f"v_add_u32 v{vd}, {colbyte}, v{vd}")
    if swz:
        p.e(f"v_bfe_u32 v{vt+1}, v0, 3, 1\nv_lshlrev_b32 v{vt+1}, 6, v{vt+1}\nv_xor_b32 v{vd}, v{vd}, v{vt+1}")
    p.e(f"v_add_u32 v{vd}, v{vd}, v{vt}")


def prologue(p):
    p.e(f"""s_cmp_ge_u32 s2, 256
s_cbranch_scc1 L_end
s_load_dwordx16 s[36:51], s[0:1], 0
s_load_dwordx4 s[52:55], s[0:1], 64
s_load_dwordx2 s[56:57], s[0:1], 80""")
    if OPT["stamps"]:
        p.e("s_memrealtime s[100:101]")
    stamp(p, 0)
    p.e(f"""v_lshrrev_b32 v1, 6, v0
v_and_b32 v0, 63, v0
v_readfirstlane_b32 s{sWAVE}, v1
v_lshlrev_b32 v1, 4, v0
s_bfe_u32 s{sA}, s2, 0x20001
s_and_b32 s{sB}, s2, 1
s_bfe_u32 s{sC}, s2, 0x20003
s_lshr_b32 s{sI}, s2, 5
s_lshl2_add_u32 s{sR}, s{sA}, s{sC}
s_and_b32 s{sU}, s{sI}, 3
s_lshl2_add_u32 s{sU}, s{sB}, s{sU}
s_and_b32 s{sT}, s2, 7
s_lshl2_add_u32 s{sT}, s{sT}, s{sC}
s_and_b32 s{sW}, s{sWAVE}, 3
s_lshl_b32 s{sM0W}, s{sW}, 11""")
    if OPT["rot"]:
        p.e(f"""s_lshl1_add_u32 s{sRHO}, s{sC}, s{sI}
s_lshl2_add_u32 s{sRHO}, s{sB}, s{sRHO}
s_add_u32 s{sRHO}, s{sRHO}, s{sA}
s_mul_i32 s{sA}, s{sRHO}, 37
s_lshr_b32 s{sA}, s{sA}, 8
s_mul_i32 s{sA}, s{sA}, 7
s_sub_u32 s{sRHO}, s{sRHO}, s{sA}""")
    else:
        p.e(f"s_mov_b32 s{sRHO}, 0")
    p.e(f"""s_lshr_b32 s{sA}, s{sI}, 2
s_lshl4_add_u32 s{sA}, s{sA}, s{sR}
s_lshl3_add_u32 s{sA}, s{sA}, s{sU}
s_lshl_b32 s{sA}, s{sA}, 9
s_lshl2_add_u32 s{sA}, s{sW}, s{sA}
s_add_u32 s{sFLAG}, s{sA}, {FLAG_OFF:#x}
s_mov_b32 s{sSPIN}, 0x40000
s_cmp_ge_u32 s{sWAVE}, 4
s_cbranch_scc1 L_H""")


XN, ACC, FR, MT = 16, (128, 160), 192, 216
NFR = 6


def m_common(p):
    p.e(f"""v_lshrrev_b32 v10, 3, v0
v_lshrrev_b32 v11, 4, v0
v_and_b32 v12, 7, v0
v_xor_b32 v12, v12, v11
v_mul_u32_u24 v10, 896, v10
v_lshl_add_u32 v2, v12, 4, v10
v_xor_b32 v3, 64, v2
v_add_u32 v3, {8*896-1024}, v3
v_add_u32 v4, {2*(8*896-1024)}, v2
v_add_u32 v5, {2*(8*896-1024)}, v3
s_lshl2_add_u32 s{sC}, s{sR}, s{sW}
s_mul_i32 s{sC}, s{sC}, {32*896}""")
    kl_table(p, 128, sC)
    p.e(f"s_mul_i32 s{sC}, s{sW}, 28672\ns_add_u32 s{sC}, s{sC}, {XBASE}")
    p.e("s_waitcnt lgkmcnt(0)")
    srd(p, 8, 36, 2048 * 896)

    def xdma(g):
        p.e(f"s_add_u32 m0, s{sC}, {g*4096}")
        for b in range(4):
            p.vmem(f"buffer_load_dwordx4 v{2+b}, {X}, s{sKL+g} offen offset:{b*1024} lds", f"x{g}")
    for g in range(3):
        xdma(g)
    stamp(p, 1)
    srd(p, 20, 56, WS_SZ)
    srd(p, 24, 52, 2048 * 896)
    srd(p, 28, 54, 256)
    srd(p, 32, 50, 896)
    p.e(f"""v_and_b32 v10, 31, v0
v_lshlrev_b32 v11, 7, v10
v_bfe_u32 v12, v10, 1, 3
v_lshrrev_b32 v13, 5, v0
v_xor_b32 v12, v12, v13
v_lshl_add_u32 v6, v12, 4, v11
v_add_u32 v6, s{sC}, v6
v_xor_b32 v7, 32, v6
v_xor_b32 v8, 64, v6
v_xor_b32 v9, 0x60, v6
s_mov_b32 s{sK0}, 0x3f803f80""")
    for k in range(4):
        p.e(f"v_mov_b32 v{MT+k}, 0")

    def stats(g):
        for d in range(16):
            x = XN + 16 * g + d
            if d % 4 == 0:
                p.wait(lg=f"xf{g}_{d//4}")
            p.e(f"v_dot2c_f32_bf16 v{MT + (d&1)}, s{sK0}, v{x}\nv_dot2c_f32_bf16 v{MT + 2 + (d&1)}, v{x}, v{x}")
    for g in range(7):
        p.wait(vm=f"x{g}")
        for j in range(4):
            p.lds(f"ds_read_b128 {vr(XN + 16*g + 4*j, 4)}, v{6+j} offset:{g*4096}", f"xf{g}_{j}")
        if g + 3 < 7:
            xdma(g + 3)
        if g == 3:
            p.e("s_barrier")
        if g == 6:
            p.wait_all(lg=True)
            p.e("s_barrier")
            stamp(p, 2)
        stats(g)
    a, b, c, d = MT, MT + 1, MT + 2, MT + 3
    RLO, RHI, CC = MT + 4, MT + 5, MT + 6
    p.e(f"""s_cmp_ge_u32 s{sI}, 4
s_cselect_b32 s{sK1}, 1.0, {f32(GS):#x}
v_add_f32 v{a}, v{a}, v{b}
v_add_f32 v{c}, v{c}, v{d}
v_mov_b32 v{b}, v{a}
v_mov_b32 v{d}, v{c}
v_permlane32_swap_b32 v{a}, v{b}
v_permlane32_swap_b32 v{c}, v{d}
v_add_f32 v{a}, v{a}, v{b}
v_add_f32 v{c}, v{c}, v{d}
v_mul_f32 v{a}, {f32(1/448):#x}, v{a}
v_mul_f32 v{c}, {f32(1/448):#x}, v{c}
v_fma_f32 v{c}, -v{a}, v{a}, v{c}
v_max_f32 v{c}, 0, v{c}
v_cvt_pk_bf16_f32 v{b}, v{a}, v{c}
v_lshlrev_b32 v{a}, 16, v{b}
v_and_b32 v{c}, 0xffff0000, v{b}
v_add_f32 v{c}, {f32(1e-5):#x}, v{c}
v_cvt_pk_bf16_f32 v{c}, v{c}, v{c}
v_lshlrev_b32 v{c}, 16, v{c}
v_sqrt_f32 v{c}, v{c}
v_cvt_pk_bf16_f32 v{c}, v{c}, v{c}
v_lshlrev_b32 v{c}, 16, v{c}
v_rcp_f32 v{c}, v{c}
v_mul_f32 v{c}, s{sK1}, v{c}""")
    T0 = MT + 8
    if OPT["exact_r"]:
        p.e(f"v_mov_b32 v{RLO}, v{c}\nv_mul_f32 v{CC}, -v{a}, v{c}")
        for i in range(112):
            x, t = XN + i, T0 + 2 * (i % 4)
            p.e(f"v_lshlrev_b32 v{t}, 16, v{x}\nv_and_b32 v{t+1}, 0xffff0000, v{x}")
            p.e(f"v_pk_fma_f32 {vr(t,2)}, {vr(t,2)}, {vr(RLO,2)}, {vr(CC,2)} op_sel_hi:[1,0,0]")
            p.e(f"v_cvt_pk_bf16_f32 v{x}, v{t}, v{t+1}")
    else:
        p.e(f"""v_cvt_pk_bf16_f32 v{RLO}, v{c}, v{c}
v_and_b32 v{RHI}, 0xffff0000, v{RLO}
v_lshrrev_b32 v{RLO}, 16, v{RLO}
v_mul_f32 v{CC}, -v{a}, v{RHI}""")
        for i in range(112 + 2):
            if i < 112:
                x, t = XN + i, T0 + 2 * (i % 4)
                p.e(f"v_dot2_f32_bf16 v{t}, v{x}, v{RLO}, v{CC}\nv_dot2_f32_bf16 v{t+1}, v{x}, v{RHI}, v{CC}")
            if i >= 2:
                t = T0 + 2 * ((i - 2) % 4)
                p.e(f"v_cvt_pk_bf16_f32 v{XN+i-2}, v{t}, v{t+1}")
    stamp(p, 3)


def m_loop(p, ops, bar_stage, hooks, bars):
    LA = OPT["la"]
    n = len(ops)

    def rd(i):
        o = ops[i]
        if (i == 0 or ops[i - 1]["stage"] != o["stage"]) and o["stage"] in bar_stage:
            p.e("s_barrier")
            bars.append((f"b{o['stage']}", max(i - LA, 0)))
        f = FR + 4 * (i % NFR)
        a = o["areg"] + (o["off"] >> 16)
        off = o["off"] & 0xFFFF
        p.lds(f"ds_read_b64_tr_b16 {vr(f,2)}, v{a} offset:{off}", f"f{i}")
        p.lds(f"ds_read_b64_tr_b16 {vr(f+2,2)}, v{a} offset:{off + o['step']}", f"f{i}")
    for i in range(LA):
        rd(i)
    for i in range(n):
        o = ops[i]
        p.wait(lg=[f"f{i}", o.get("need")])
        f = FR + 4 * (i % NFR)
        a, b = (o["xn"], f) if o["swap"] else (f, o["xn"])
        p.e(mfma(o["acc"], a, b, o["c"]))
        if i + LA < n:
            rd(i + LA)
        for h in hooks.get(i, []):
            h()


def full_pass_ops(ps, accset, c0, swap, need=None):
    ops = []
    for s in range(7):
        g = 7 * ps + s
        for ks in range(4):
            for t in range(2):
                acc = ACC[accset] + 16 * t
                first = s == 0 and ks == 0
                ops.append(dict(stage=g, areg=2 + 2 * t, off=slot(g % NRING) + ks * 2048, step=512, acc=acc,
                                xn=XN + 16 * s + 4 * ks, c=(c0 or vr(acc, 16)) if first else vr(acc, 16), swap=swap,
                                need=need if first else None))
    return ops


def add(hooks, i, f):
    hooks.setdefault(i, []).append(f)


def bar_hook(p, bars, name, i, lg):
    def f():
        p.wait(lg=lg)
        p.e("s_barrier")
        bars.append((name, i))
    return f


def m_addr(p, col1):
    tr_lane_addr(p, 2, 10, 8, 0, True)
    tr_lane_addr(p, 4, 10, 8, col1, True)
    p.e(f"v_add_u32 v3, 0x10000, v2\nv_add_u32 v5, 0x10000, v4\nv_add_u32 v8, s{sM0W}, v1\nv_add_u32 v8, {HO}, v8")


def ho_off(blk):
    return (blk >> 1) * 8192 + (blk & 1) * 1024


def m_final(p):
    p.e(f"""v_lshrrev_b32 v10, 3, v0
v_and_b32 v11, 7, v0
v_lshlrev_b32 v12, 4, v11
v_mul_u32_u24 v13, 896, v10
v_add_u32 v13, v13, v12
s_lshl3_add_u32 s{sA}, s{sT}, s{sW}
s_mul_i32 s{sA}, s{sA}, {8*896}
s_lshl_b32 s{sB}, s{sI}, 7
s_add_u32 s{sA}, s{sA}, s{sB}
s_add_u32 s{sC}, s{sA}, {32*896}""")
    p.vmem(f"buffer_load_dwordx4 v[16:19], v13, {X}, s{sA} offen", "res")
    p.vmem(f"buffer_load_dwordx4 v[20:23], v13, {X}, s{sC} offen", "res")
    p.vmem(f"buffer_load_dwordx4 v[24:27], v12, {BIAS}, s{sB} offen", "res")
    p.e(f"""s_and_b32 s{sP}, s{sW}, 1
s_lshl_b32 s{sP}, s{sP}, 3
v_or_b32 v14, s{sP}, v10
v_lshlrev_b32 v15, 1, v11
v_xor_b32 v14, v14, v15
v_lshlrev_b32 v14, 4, v14
v_lshl_add_u32 v14, v10, 8, v14
s_lshl_b32 s{sP}, s{sW}, 13
s_add_u32 s{sP}, s{sP}, {slot(0)}
v_add_u32 v14, s{sP}, v14
v_xor_b32 v15, 16, v14
s_mov_b32 s{sK0}, {f32(1/GS):#x}""")
    p.wait(vm="res")
    for k in range(4):
        p.e(f"v_lshlrev_b32 v{28+2*k}, 16, v{24+k}\nv_and_b32 v{29+2*k}, 0xffff0000, v{24+k}")
    for it in range(2):
        for k in range(4):
            d = 36 + 8 * it + 2 * k
            p.e(f"v_lshlrev_b32 v{d}, 16, v{16+4*it+k}\nv_and_b32 v{d+1}, 0xffff0000, v{16+4*it+k}")
            p.e(f"v_add_f32 v{d}, v{d}, v{28+2*k}\nv_add_f32 v{d+1}, v{d+1}, v{29+2*k}")
    stamp(p, 7)
    p.e("s_barrier")
    stamp(p, 8)
    for it in range(2):
        for wp in range(4):
            for j in range(2):
                p.lds(f"ds_read_b128 {vr(64 + 32*it + 8*wp + 4*j, 4)}, v{14+j} offset:{it*32768 + wp*2048}", f"r{it}_{wp}")
    for it in range(2):
        b = 64 + 32 * it
        p.wait(lg=f"r{it}_1")
        for k in range(0, 8, 2):
            p.e(f"v_pk_add_f32 {vr(b+k,2)}, {vr(b+k,2)}, {vr(b+8+k,2)}")
        p.wait(lg=f"r{it}_3")
        for k in range(0, 8, 2):
            p.e(f"v_pk_add_f32 {vr(b+16+k,2)}, {vr(b+16+k,2)}, {vr(b+24+k,2)}")
        for k in range(0, 8, 2):
            p.e(f"v_pk_add_f32 {vr(b+k,2)}, {vr(b+k,2)}, {vr(b+16+k,2)}")
        for k in range(8):
            p.e(f"v_fma_f32 v{b+k}, v{b+k}, s{sK0}, v{36+8*it+k}")
        for k in range(4):
            p.e(f"v_cvt_pk_bf16_f32 v{b+8+k}, v{b+2*k}, v{b+2*k+1}")
        p.vmem(f"buffer_store_dwordx4 {vr(b+8,4)}, v13, {OUT}, s{sA if it == 0 else sC} offen", "out")
    finish(p)


def prog_MF(p):
    bars, hooks = [], {}
    m_addr(p, 64)
    tr_lane_addr(p, 6, 10, 8, 0, False)
    p.e("v_add_u32 v7, 0x10000, v6\nv_lshrrev_b32 v9, 5, v0\nv_lshlrev_b32 v9, 4, v9")

    def bias_rd(ps, blk):
        return lambda: p.lds(f"ds_read_b128 {vr(ACC[ps % 2] + 4*blk, 4)}, v9 offset:{(64*ps + 8*blk)*4}", f"bias{ps}")

    def ho_wr(ps, blk):
        return lambda: p.lds(f"ds_write_b128 v8, {vr(ACC[ps % 2] + 4*blk, 4)} offset:{ho_off(blk)}", f"ho{ps}")
    for blk in range(8):
        bias_rd(0, blk)()
    ops = []
    for ps in range(3):
        ops += full_pass_ops(ps, ps % 2, None, False, need=f"bias{ps}")
    acc = ACC[1]
    for s in range(7):
        g = 21 + s // 2
        for ks in range(4):
            ops.append(dict(stage=g, areg=6, off=slot(g % NRING) + ks * 2048 + (s & 1) * 1024, step=256, acc=acc,
                            xn=XN + 16 * s + 4 * ks, c=vr(acc, 16), swap=False, need="bias3" if s == 0 and ks == 0 else None))
    for ps in range(3):
        n = 56 * (ps + 1)
        for blk in range(8):
            add(hooks, n + 1 + blk // 2, ho_wr(ps, blk))
        add(hooks, n + 6, bar_hook(p, bars, f"ho{ps}", n + 6, f"ho{ps}"))
        for blk in range(8 if ps < 2 else 4):
            add(hooks, 56 * ps + 24 + blk, bias_rd(ps + 1, blk))
    if OPT["stamps"]:
        add(hooks, 55, lambda: stamp(p, 4))
    m_loop(p, ops, set(range(23)), hooks, bars)
    p.e("s_barrier")
    bars.append(("bG", len(ops)))
    stamp(p, 5)
    p.e(f"""s_mov_b32 s{sK0}, {f32(-GA/GS):#x}
s_lshl2_add_u32 s{sA}, s{sR}, s{sW}
s_mul_i32 s{sA}, s{sA}, 56
s_mul_i32 s{sB}, s{sU}, 7
s_add_u32 s{sA}, s{sA}, s{sB}
s_bitcmp1_b32 s{sU}, 0
s_cselect_b32 s{sB}, 0, 6
s_add_u32 s{sA}, s{sA}, s{sB}
s_lshl_b32 s{sA}, s{sA}, 11""")
    for txt, _, o in gelu_ops(acc, 16, MT, MT + 8):
        p.e(txt)
        if o is not None and o % 4 == 3:
            p.vmem(f"buffer_store_dwordx4 {vr(MT + 8 + o - 3, 4)}, v1, {WS}, s{sA} offen offset:{(o//4)*1024} sc1", "hst")
    p.wait(vm="hst")
    flag_store(p, 2, 3, 16)
    stamp(p, 6)
    m_final(p)
    return bars


def prog_MA(p):
    bars, hooks = [], {}
    m_addr(p, 56)
    EPS = 232
    for k in range(16):
        p.e(f"v_mov_b32 v{EPS+k}, {f32(1e-6):#x}")
    ops = full_pass_ops(0, 0, vr(EPS, 16), True) + full_pass_ops(1, 1, "0", True) + full_pass_ops(2, 0, vr(EPS, 16), False)
    for blk in range(8):
        add(hooks, 57 + blk // 2, (lambda b: lambda: p.lds(f"ds_write_b128 v8, {vr(ACC[0] + 4*b, 4)} offset:{ho_off(b)}", "hoK"))(blk))
    add(hooks, 62, bar_hook(p, bars, "hoK", 62, "hoK"))

    def v_wr(b):
        def f():
            for k in range(4):
                p.e(f"v_cvt_pk_bf16_f32 v{MT + 4*b + k}, v{ACC[1] + 8*b + 2*k}, v{ACC[1] + 8*b + 2*k + 1}")
            p.lds(f"ds_write_b128 v8, {vr(MT + 4*b, 4)} offset:{ho_off(4 + b)}", "hoV")
        return f
    for b in range(4):
        add(hooks, 113 + b, v_wr(b))
    add(hooks, 118, bar_hook(p, bars, "hoV", 118, "hoV"))
    gc = Gate(12, 13, DBG, "0", 0, 64)
    gz = Gate(14, 15, WS, f"s{sP}", 128, 1)
    ZF = ACC[1]

    def z_issue():
        p.e(f"""v_and_b32 v13, 3, v0
v_lshlrev_b32 v13, 6, v13
v_and_b32 v15, 15, v0
v_lshlrev_b32 v15, 12, v15
v_bfe_u32 v14, v0, 4, 1
v_lshl_add_u32 v15, v14, 2, v15
s_lshl_b32 s{sP}, s{sU}, 9
s_add_u32 s{sP}, s{sP}, {FLAG_OFF + 128*512 + 8:#x}""")
        gc.issue(p)
    add(hooks, 125, z_issue)
    add(hooks, 150, lambda: (gc.check(p), gz.issue(p)))
    if OPT["stamps"]:
        add(hooks, 55, lambda: stamp(p, 4))
    m_loop(p, ops, set(range(16)), hooks, bars)
    p.e("s_barrier")
    bars.append(("bG", len(ops)))
    stamp(p, 5)
    p.e(f"""v_and_b32 v10, 31, v0
v_lshlrev_b32 v11, 6, v10
v_lshrrev_b32 v13, 5, v0
v_lshl_add_u32 v11, v13, 4, v11
v_mov_b32 v13, 0x7f000000
v_cmp_gt_u32 vcc, 16, v10
v_cndmask_b32 v11, v13, v11, vcc
s_lshl_b32 s{sP+1}, s{sU}, 11
s_add_u32 s{sP+1}, s{sP+1}, {Z_OFF:#x}""")
    gz.check(p)
    for hh in range(2):
        for ks in range(2):
            p.vmem(f"buffer_load_dwordx4 {vr(ZF + 8*hh + 4*ks, 4)}, v11, {WS}, s{sP+1} offen offset:{hh*1024 + ks*32} sc1", "z")
    Q = ACC[0]
    phi_consts(p, MT)
    for txt, _, _ in phi_ops(Q, 32, MT):
        p.e(txt)
    p.e("s_mov_b32 exec_lo, 0")
    for hh in range(2):
        for k in range(4):
            p.e(f"v_mov_b32 v{Q + 16*hh + 12 + k}, 0")
    p.e("s_mov_b32 exec_lo, -1")
    PB, DN = ZF + 16, 16
    for k in range(16):
        p.e(f"v_cvt_pk_bf16_f32 v{PB+k}, v{Q+2*k}, v{Q+2*k+1}")
    p.wait(vm="z")
    for ks in range(2):
        for hh in range(2):
            d = DN + 16 * hh
            p.e(mfma(d, ZF + 8 * hh + 4 * ks, PB + 8 * hh + 4 * ks, "0" if ks == 0 else vr(d, 16)))
    p.e(f"""s_lshl2_add_u32 s{sA}, s{sR}, s{sW}
s_lshl3_add_u32 s{sA}, s{sA}, s{sU}
s_lshl_b32 s{sA}, s{sA}, 12
s_add_u32 s{sA}, s{sA}, {PQ_OFF:#x}""")
    for w in (4, 2, 1):
        for k in range(w):
            for hh in range(2):
                d = DN + 16 * hh
                p.e(f"v_add_f32 v{d+k}, v{d+k}, v{d+k+w}")
    for hh in range(2):
        p.e(f"v_mov_b32 v{DN+16*hh+1}, v{DN+16*hh}")
    for hh in range(2):
        p.e(f"v_permlane32_swap_b32 v{DN+16*hh}, v{DN+16*hh+1}")
    for step in (lambda d: f"v_add_f32 v{d}, v{d}, v{d+1}", lambda d: f"v_add_f32 v{d}, s{sK1}, v{d}",
                 lambda d: f"v_rcp_f32 v{d}, v{d}", lambda d: f"v_mul_f32 v{d}, {f32(GS):#x}, v{d}"):
        for hh in range(2):
            p.e(step(DN + 16 * hh))
    for b in range(4):
        for k in range(8):
            p.e(f"v_mul_f32 v{Q+8*b+k}, v{DN + 16*(b//2)}, v{Q+8*b+k}")
        for k in range(4):
            p.e(f"v_cvt_pk_bf16_f32 v{PB+4*b+k}, v{Q+8*b+2*k}, v{Q+8*b+2*k+1}")
        p.vmem(f"buffer_store_dwordx4 {vr(PB+4*b,4)}, v1, {WS}, s{sA} offen offset:{b*1024} sc1", "pq")
    p.wait(vm="pq")
    flag_store(p, 2, 1, 0)
    stamp(p, 6)
    p.e(f"s_cmp_lg_u32 s{sI}, 7\ns_cbranch_scc1 L_MA_fin")
    finish(p)
    p.label("L_MA_fin")
    m_final(p)
    return bars


VW0, VW1, VWH, VB0, VB1, VHO = 2, 3, 4, 5, 6, 7
VTR = 8
VL = 248
P2ACC, P2W = 16, 80
GIN, GOUT, GT = 160, 192, 208
sCOL, sCB = 76, 77
P2_TILES = [0, 1, 8, 9, 2, 3, 10, 11, 4, 5, 12, 13, 6, 7]


def h_common(p):
    p.e(f"""v_and_b32 v10, 7, v0
v_bfe_u32 v11, v0, 4, 1
v_lshlrev_b32 v11, 2, v11
v_xor_b32 v14, v10, v11
v_lshrrev_b32 v15, 3, v0
s_waitcnt lgkmcnt(0)""")
    srd(p, 20, 56, WS_SZ)
    srd(p, 28, 54, 256)
    srd(p, 32, 46, 3584)
    skip = uid("noclr")
    p.e(f"""s_cmp_lg_u32 s{sW}, 0
s_cbranch_scc1 {skip}
v_mov_b32 v16, 0
v_mov_b32 v17, 0
v_mov_b32 v18, 0
v_mov_b32 v19, 0
v_mov_b32 v20, 1
v_mov_b32 v21, {CNT_OFF}
s_mov_b32 exec_hi, 0
buffer_store_dwordx4 v[16:19], v1, {WS}, s{sFLAG} offen sc1
ds_write_b32 v21, v16
s_and_b32 s{sA}, s2, 3
s_lshl_b32 s{sA}, s{sA}, 6
s_mov_b32 exec_lo, 1
s_waitcnt vmcnt(0) lgkmcnt(0)
buffer_atomic_add v20, off, {DBG}, s{sA} sc1
s_mov_b64 exec, -1""")
    p.label(skip)
    if OPT["codepf"]:
        skip = uid("nopf")
        p.e(f"""s_cmp_lt_u32 s{sW}, 2
s_cbranch_scc1 {skip}
s_getpc_b64 s[78:79]""")
        p.label("L_pc")
        p.e(f"""s_sub_u32 s78, s78, L_pc-{NAME}_kernel
s_subb_u32 s79, s79, 0
s_lshr_b32 s{sA}, s2, 3
s_lshl1_add_u32 s{sA}, s{sA}, s{sW}
s_sub_u32 s{sA}, s{sA}, 2
s_lshl_b32 s{sA}, s{sA}, 10
s_min_u32 s{sA}, s{sA}, L_end-{NAME}_kernel-1024
v_add_u32 v16, s{sA}, v1
global_load_dwordx4 v[244:247], v16, s[78:79]""")
        p.label(skip)
    p.e(f"v_add_u32 v{VHO}, s{sM0W}, v1\nv_add_u32 v{VHO}, {HO}, v{VHO}")
    for t in range(2):
        tr_lane_addr(p, VTR + 3 * t, 16, 4, 64 * t, True)
        p.e(f"v_add_u32 v{VTR+3*t}, s{sM0W}, v{VTR+3*t}")
        p.e(f"v_add_u32 v{VTR+3*t+1}, 0x10000, v{VTR+3*t}\nv_add_u32 v{VTR+3*t+2}, 0x20000, v{VTR+3*t}")


def w_lane(p, v0_, v1_, pitch, srow, cap):
    if cap:
        p.e("v_min_u32 v16, 6, v14")
    else:
        p.e("v_mov_b32 v16, v14")
    p.e(f"v_add_u32 v17, s{srow}, v15\nv_mul_u32_u24 v17, {pitch}, v17\nv_lshl_add_u32 v{v0_}, v16, 4, v17")
    p.e(f"v_add_u32 v{v1_}, {8*pitch - 1024}, v{v0_}")


class Stream:
    def __init__(self, p, G, issue1, nB, issue2):
        self.p, self.G, self.issue1, self.nB, self.issue2 = p, G, issue1, nB, issue2
        self.next = 0
        self.freed = -1
        self.xfree = False
        self.free = []
        self.slot2 = {}

    def release(self, g):
        for k in range(self.freed + 1, min(g, self.G - 1) + 1):
            if k + NRING >= self.G:
                self.free.append(k % NRING)
        self.freed = max(self.freed, g)

    def can(self):
        g = self.next
        if g < self.G:
            return (g < 5) or (self.xfree and g - NRING <= self.freed)
        return g - self.G < self.nB and bool(self.free)

    def issue(self, n=99):
        k = 0
        while k < n and self.can():
            g = self.next
            if g < self.G:
                self.issue1(g, slot(g % NRING))
            else:
                s = self.free.pop(0)
                self.slot2[g - self.G] = s
                self.issue2(g - self.G, slot(s))
            self.next += 1
            k += 1
        return k


def dma_pair(p, rs, va, vb, base, tag):
    p.e(f"s_add_u32 m0, s{sM0W}, {base}")
    p.vmem(f"buffer_load_dwordx4 v{va}, {rs}, s{sA} offen lds", tag)
    p.vmem(f"buffer_load_dwordx4 v{vb}, {rs}, s{sA} offen offset:1024 lds", tag)


def w2_issue(p):
    def f(kk, base):
        row = P2_TILES[kk // 2] * 32 + (kk & 1) * 16
        p.e(f"s_add_u32 s{sA}, s{sCB}, {row*896}")
        dma_pair(p, WB, VB0, VB1, base, f"B{kk}")
    return f


def w2_setup(p):
    srd(p, 16, 48, 1792 * 896)
    p.e(f"s_mul_i32 s{sC}, s{sW}, 448\ns_lshl_b32 s{sCB}, s{sI}, 7")
    w_lane(p, VB0, VB1, 896, sC, False)


def h_phase1(p, st, bars, covers, work_after, fill):
    p.e("s_barrier")
    st.issue(5)
    stamp(p, 1)
    p.wait_all(lg=True)
    p.e("s_barrier")
    st.xfree = True
    st.issue(fill)
    for k, (name, idx) in enumerate(bars):
        c = covers(name)
        if c is not None:
            assert st.next > c, (name, c, st.next)
            p.wait(vm=f"A{c}")
        p.e("s_barrier")
        if name == "bG":
            st.release(st.G - 1)
            return
        if name[0] == "b":
            st.release(int(name[1:]) - 2)
        work_after(name, bars[k + 1][1] - idx)


class Slicer:
    def __init__(self, p):
        self.p, self.q, self.rate, self.credit = p, [], 0.0, 0.0

    def load(self, items, span):
        assert not self.q, "previous slice not drained"
        self.q = list(items)
        self.rate = sum(c for _, c in items) / span
        self.credit = 0.0

    def run(self, dm):
        self.credit += self.rate * dm + 1e-6
        while self.q and self.q[0][1] <= self.credit:
            f, c = self.q.pop(0)
            self.credit -= c
            f()

    def drain(self):
        while self.q:
            self.q.pop(0)[0]()


def ho_read(p):
    for blk in range(8):
        p.lds(f"ds_read_b128 {vr(GIN + 4*blk, 4)}, v{VHO} offset:{ho_off(blk)}", f"hi{blk}")


def with_waits(p, ops, per):
    items = []
    for k, (txt, c, o) in enumerate(ops):
        def f(txt=txt, k=k):
            if k % per == 0:
                p.wait(lg=f"hi{k // per}")
            p.e(txt)
        items.append((f, c, o))
    return items


def phase2(p, st, hooks):
    L = OPT["p2la"]
    sH, sQ, sMM, sF, sG = sP, sP + 2, sP + 4, sP + 6, sP + 8
    for m in range(7):
        p.e(f"v_add_u32 v{VL+m}, {4096*m}, v1")
    p.e(f"""s_mul_i32 s{sH}, s{sT}, {2*56*2048}
s_mul_i32 s{sA}, s{sW}, {14*2048}
s_add_u32 s{sH}, s{sH}, s{sA}
s_add_u32 s{sH+1}, s{sH}, {56*2048}
s_lshl3_add_u32 s{sQ}, s{sT}, s{sW}
s_lshl_b32 s{sQ}, s{sQ}, 13
s_add_u32 s{sQ}, s{sQ}, {PQ_OFF:#x}
s_add_u32 s{sQ+1}, s{sQ}, {16*2048}
s_lshl3_add_u32 s{sMM}, s{sI}, s{sW}
s_lshl_b32 s{sMM}, s{sMM}, 13
s_add_u32 s{sMM}, s{sMM}, {M_OFF:#x}
s_add_u32 s{sMM+1}, s{sMM}, {16*2048}
s_lshr_b32 s{sA}, s{sT}, 1
s_lshl2_add_u32 s{sA}, s{sA}, s{sW}
s_lshl_b32 s{sA}, s{sA}, 10
s_and_b32 s{sB}, s{sT}, 1
s_lshl3_add_u32 s{sA}, s{sB}, s{sA}
s_add_u32 s{sF}, s{sA}, {FLAG_OFF:#x}
s_add_u32 s{sF+1}, s{sF}, {128*512}
s_lshl_b32 s{sA}, s{sW}, 14
s_lshr_b32 s{sB}, s{sI}, 1
s_lshl2_add_u32 s{sA}, s{sB}, s{sA}
s_add_u32 s{sG}, s{sA}, {FLAG_OFF + 131*512:#x}
v_and_b32 v2, 1, v0
v_lshlrev_b32 v2, 9, v2
v_and_b32 v3, 2, v0
v_lshl_add_u32 v2, v3, 1, v2
v_and_b32 v3, 3, v0
v_lshlrev_b32 v4, 6, v3
v_lshlrev_b32 v3, 12, v3
v_and_b32 v14, 4, v0
v_lshl_add_u32 v3, v14, 9, v3""")
    gc = Gate(14, 4, DBG, "0", 0, 64)
    gates = {0: [Gate(14, 2, WS, f"s{sF}", 0, 1)], 8: [Gate(14, 2, WS, f"s{sF}", 0, 2)], 16: [Gate(14, 2, WS, f"s{sF}", 0, 3)],
             24: [Gate(14, 2, WS, f"s{sF}", 16, 3)],
             28: [Gate(15, 2, WS, f"s{sF+1}", 0, 1), Gate(255, 3, WS, f"s{sG}", 384, 1)]}
    free = list(range(96, 248, 4))
    regs = {}

    def loads(kk):
        for g in gates.get(kk, []):
            g.check(p)
        if kk < 28:
            o = P2_TILES[kk // 2] * 2048 + (kk & 1) * 1024
            src = [sH, sH + 1]
        else:
            o = (kk - 28) * 1024
            src = [sQ, sQ + 1, sMM, sMM + 1]
        regs[kk] = []
        for s in src:
            r = free.pop(0)
            regs[kk].append(r)
            p.vmem(f"buffer_load_dwordx4 {vr(r,4)}, v{VL + (o >> 12)}, {WS}, s{s} offen offset:{o & 4095} sc1", f"h{kk}")
        for g in gates.get(kk + 4, []):
            g.issue(p)

    def wread(kk):
        p.wait(vm=f"B{kk}")
        base = slot(st.slot2[kk])
        for t in range(2):
            f = P2W + 8 * (kk & 1) + 4 * t
            a = VTR + 3 * t + (base >> 16)
            p.lds(f"ds_read_b64_tr_b16 {vr(f,2)}, v{a} offset:{base & 0xFFFF}", f"w{kk}")
            p.lds(f"ds_read_b64_tr_b16 {vr(f+2,2)}, v{a} offset:{(base & 0xFFFF) + 1024}", f"w{kk}")
    gc.issue(p)
    st.issue(4)
    gc.check(p)
    gates[0][0].issue(p)
    st.issue(4)
    stamp(p, 4)
    for kk in range(L):
        loads(kk)
    wread(0)
    stamp(p, 5)
    for kk in range(36):
        p.wait(vm=f"h{kk}", lg=f"w{kk}")
        if kk < 28:
            st.free.append(st.slot2[kk])
            A = [P2W + 8 * (kk & 1), P2W + 8 * (kk & 1) + 4]
        else:
            A = regs[kk][2:]
        B = regs[kk][:2]
        k = 0
        for nt in range(2):
            for tt in range(2):
                d = P2ACC + 32 * nt + 16 * tt
                p.e(mfma(d, A[nt], B[tt], "0" if kk == 0 else vr(d, 16)))
                if k == 0 and kk + 1 < 28:
                    wread(kk + 1)
                if k == 1 and kk + L < 36:
                    loads(kk + L)
                if k == 2:
                    st.issue(2)
                k += 1
        free += regs[kk]
        for h in hooks.get(kk, []):
            h()
        if kk == 27:
            stamp(p, 6)
    stamp(p, 7)
    p.e(f"""v_and_b32 v2, 31, v0
v_lshrrev_b32 v3, 5, v0
v_and_b32 v4, 15, v0
v_xor_b32 v3, v3, v4
v_lshlrev_b32 v3, 4, v3
v_and_b32 v4, 7, v0
v_lshl_add_u32 v3, v4, 8, v3
v_lshrrev_b32 v2, 3, v2
v_lshl_add_u32 v3, v2, 13, v3
s_add_u32 s{sA}, s{sM0W}, {slot(0)}
v_add_u32 v3, s{sA}, v3""")
    for nt in range(2):
        for q in range(4):
            p.e(f"v_xor_b32 v{4 + 4*nt + q}, {(8*nt + 2*q) << 4}, v3")
    for nt in range(2):
        for tt in range(2):
            for q in range(4):
                p.lds(f"ds_write_b128 v{4 + 4*nt + q}, {vr(P2ACC + 32*nt + 16*tt + 4*q, 4)} offset:{tt*32768}")
    p.wait_all(lg=True)
    stamp(p, 8)
    p.e("s_barrier")
    finish(p)


def prog_HF(p, bars):
    srd(p, 12, 44, 448 * 3584)
    w2_setup(p)
    p.e(f"s_lshl_b32 s{sC}, s{sW}, 4")
    w_lane(p, VW0, VW1, 3584, sC, False)
    p.e(f"""v_lshrrev_b32 v16, 2, v0
v_add_u32 v16, s{sC}, v16
v_mul_u32_u24 v16, 3584, v16
v_and_b32 v17, 3, v0
v_lshl_add_u32 v{VWH}, v17, 4, v16
s_mul_i32 s{sC}, s{sU}, 448
s_and_b32 s{sP}, s{sU}, 1
s_lshl_b32 s{sA}, s{sP}, 6
s_add_u32 s{sC}, s{sC}, s{sA}""")
    kl_table(p, 64 * 3584, sC)
    p.e(f"s_mul_i32 s{sCOL}, s{sP}, 448\ns_sub_u32 s{sCOL}, 384, s{sCOL}")
    skip = uid("nobias")
    p.e(f"""s_cmp_lg_u32 s{sW}, 1
s_cbranch_scc1 {skip}
s_lshl_b32 s{sA}, s{sP}, 3
v_add_u32 v16, s{sA}, v0
v_subrev_u32 v17, 56, v16
v_min_u32 v16, v16, v17
v_lshlrev_b32 v16, 3, v16
s_mul_i32 s{sA}, s{sU}, 448
buffer_load_dwordx2 v[18:19], v16, {BIAS}, s{sA} offen
s_mov_b32 s{sB}, {f32(GS):#x}
s_waitcnt vmcnt(0)
v_lshlrev_b32 v20, 16, v18
v_and_b32 v21, 0xffff0000, v18
v_lshlrev_b32 v22, 16, v19
v_and_b32 v23, 0xffff0000, v19
v_mul_f32 v20, s{sB}, v20
v_mul_f32 v21, s{sB}, v21
v_mul_f32 v22, s{sB}, v22
v_mul_f32 v23, s{sB}, v23
ds_write_b128 v1, v[20:23]
s_waitcnt lgkmcnt(0)""")
    p.label(skip)
    sHS = sP + 10
    p.e(f"""s_mov_b32 s{sK0}, {f32(-GA/GS):#x}
s_lshl2_add_u32 s{sHS}, s{sR}, s{sW}
s_mul_i32 s{sHS}, s{sHS}, 56
s_mul_i32 s{sB}, s{sU}, 7
s_add_u32 s{sHS}, s{sHS}, s{sB}
s_add_u32 s{sHS}, s{sHS}, s{sP}
s_lshl_b32 s{sHS}, s{sHS}, 11
s_add_u32 s{sHS+1}, s{sHS}, 4096
s_add_u32 s{sHS+2}, s{sHS}, 8192""")

    def issue1(g, base):
        if g < 21:
            p.e(f"s_add_u32 s{sA}, s{sKL + g % 7}, {128 * (g // 7)}")
            dma_pair(p, WA, VW0, VW1, base, f"A{g}")
        else:
            for i in range(2):
                s = 2 * (g - 21) + i
                if s < 7:
                    p.e(f"s_add_u32 s{sA}, s{sKL + s}, s{sCOL}\ns_add_u32 m0, s{sM0W}, {base + 1024*i}")
                    p.vmem(f"buffer_load_dwordx4 v{VWH}, {WA}, s{sA} offen lds", f"A{g}")
    st = Stream(p, 25, issue1, 28, w2_issue(p))
    sl = Slicer(p)
    idx = dict(bars)

    def gelu_items(ps):
        items = []
        for f, c, o in with_waits(p, gelu_ops(GIN, 32, GT, GOUT), 26):
            items.append((f, c))
            if o is not None and o % 4 == 3:
                items.append((lambda o=o: p.vmem(
                    f"buffer_store_dwordx4 {vr(GOUT + o - 3, 4)}, v1, {WS}, s{sHS+ps} offen offset:{(o//4)*1024} sc1", f"hs{ps}"), 8))
        return items

    def flag(ps):
        p.wait(vm=f"hs{ps}")
        flag_store(p, 15, ps + 1, 0)

    def covers(name):
        if name == "ho2":
            return 24
        return int(name[1:]) if name[0] == "b" and name != "bG" else None

    def work(name, dm):
        if name.startswith("ho"):
            ps = int(name[2:])
            sl.drain()
            ho_read(p)
            span = idx[f"ho{ps+1}"] - idx[name] if ps < 2 else 2 * (idx["bG"] - idx[name])
            sl.load(gelu_items(ps), span)
            if ps == 0:
                stamp(p, 2)
        else:
            st.issue(2)
        if name == "b19":
            flag(0)
        sl.run(dm)
    h_phase1(p, st, bars, covers, work, 4)
    flag(1)
    p.wait(lg="hi7")
    st.free = [15, 16, 17, 18] + st.free
    st.issue(2)
    sl.drain()
    stamp(p, 3)
    phase2(p, st, {0: [lambda: flag(2)]})


def prog_HA(p, bars, maker):
    srd(p, 12, 38, 448 * 2688)
    sHD = sP + 12
    if maker:
        srd(p, 16, 40, 448 * 896)
        p.e(f"""s_lshr_b32 s{sHD}, s{sT}, 1
s_mul_i32 s{sC}, s{sHD}, 28
s_lshl_b32 s{sCB}, s{sW}, 8""")
        w_lane(p, VB0, VB1, 896, sC, False)

        def issue2(kk, base):
            p.e(f"s_add_u32 s{sA}, s{sCB}, {(kk >> 1)*128 + (kk & 1)*16*896}")
            dma_pair(p, WB, VB0, VB1, base, f"B{kk}")
        nB = 4
    else:
        w2_setup(p)
        issue2, nB = w2_issue(p), 28
    p.e(f"s_lshl_b32 s{sC}, s{sW}, 4")
    w_lane(p, VW0, VW1, 2688, sC, True)
    p.e(f"s_mul_i32 s{sC}, s{sU}, 112")
    kl_table(p, 64 * 2688, sC)
    phi_consts(p, GT)
    PK, VV, DD, ONES = 96, 128, 16, 32
    sZ, sKV = sP + 10, sP + 11
    VRD, VKO = VWH, 15
    p.e(f"""s_and_b32 s{sA}, s{sW}, 1
s_lshl1_add_u32 s{sB}, s{sU}, s{sA}
s_lshl_b32 s{sA}, s{sA}, 13
s_add_u32 s{sA}, s{sA}, {HO}
v_add_u32 v{VRD}, s{sA}, v1
s_lshl4_add_u32 s{sZ}, s{sB}, s{sR}
s_lshl_b32 s{sZ}, s{sZ}, 6
s_add_u32 s{sZ}, s{sZ}, {Z_OFF:#x}
s_lshl_b32 s{sKV}, s{sB}, 5
s_add_u32 s{sKV}, s{sKV}, s{sR}
s_lshl_b32 s{sKV}, s{sKV}, 11
s_add_u32 s{sKV}, s{sKV}, {KV_OFF:#x}
v_lshrrev_b32 v16, 5, v0
v_lshlrev_b32 v14, 4, v16
v_and_b32 v17, 15, v0
v_add_u32 v17, v17, v14
v_lshlrev_b32 v17, 4, v17
v_bfe_u32 v16, v0, 4, 1
v_lshl_add_u32 v{VKO}, v16, 15, v17
v_lshl_add_u32 v255, v16, 11, v17""")
    for k in range(4):
        p.e(f"v_mov_b32 v{ONES+k}, 0x3f803f80")

    def issue1(g, base):
        p.e(f"s_add_u32 s{sA}, s{sKL + g % 7}, {(896, 1792, 0)[g // 7]}")
        dma_pair(p, WA, VW0, VW1, base, f"A{g}")
    st = Stream(p, 21, issue1, nB, issue2)
    sl = Slicer(p)
    idx = dict(bars)

    def k_items():
        items = []
        ops = with_waits(p, phi_ops(GIN, 32, GT), 16)
        for b in range(4):
            items += [(f, c) for f, c, _ in ops[32 * b:32 * b + 32]]
            for k in range(4):
                items.append((lambda b=b, k=k: p.e(f"v_cvt_pk_bf16_f32 v{GOUT+4*b+k}, v{GIN+8*b+2*k}, v{GIN+8*b+2*k+1}"), 4))
        for b in range(4):
            items.append((lambda b=b: p.lds(f"ds_write_b128 v{VHO}, {vr(GOUT+4*b,4)} offset:{ho_off(b)}", "pk"), 4))
        items.append((lambda: p.wait_all(lg=True), 4))
        return items

    def covers(name):
        if name == "hoV":
            return 20
        return int(name[1:]) if name[0] == "b" and name != "bG" else None

    def chain(a_of, b_of):
        for j in range(8):
            p.e(mfma(DD, a_of(j), b_of(j), "0" if j == 0 else vr(DD, 16)))

    def work(name, dm):
        if name == "hoK":
            ho_read(p)
            sl.load(k_items(), idx["b13"] - idx["hoK"])
            stamp(p, 2)
        elif name == "b13":
            assert not sl.q
            for j in range(8):
                p.lds(f"ds_read_b128 {vr(PK+4*j,4)}, v{VRD} offset:{j*1024}", "pkr")
            st.issue(2)
            p.wait_all(lg=True)
            skip = uid("noz")
            p.e(f"s_cmp_lt_u32 s{sW}, 2\ns_cbranch_scc1 {skip}")
            chain(lambda j: PK + 4 * j, lambda j: ONES)
            for k in range(8):
                p.e(f"v_cvt_pk_bf16_f32 v{GOUT+k}, v{DD+2*k}, v{DD+2*k+1}")
            p.e("s_mov_b32 exec_lo, 1\ns_mov_b32 exec_hi, 1")
            for ks in range(2):
                p.vmem(f"buffer_store_dwordx4 {vr(GOUT+4*ks,4)}, v14, {WS}, s{sZ} offen offset:{32*ks} sc1", "zs", ghost=True)
            p.e("s_mov_b64 exec, -1")
            p.label(skip)
        elif name == "hoV":
            zpath, done = uid("zf"), uid("kvdone")
            p.e(f"s_cmp_ge_u32 s{sW}, 2\ns_cbranch_scc1 {zpath}")
            for j in range(8):
                p.lds(f"ds_read_b128 {vr(VV+4*j,4)}, v{VRD} offset:{16384 + j*1024}", f"vr{j}")
            p.e("s_setprio 2")
            for j in range(8):
                p.wait(lg=f"vr{j}")
                p.e(mfma(DD, VV + 4 * j, PK + 4 * j, "0" if j == 0 else vr(DD, 16)))
            for q in range(4):
                p.vmem(f"buffer_store_dwordx4 {vr(DD+4*q,4)}, v{VKO}, {WS}, s{sKV} offen offset:{512*q} sc1", "kvs", ghost=True)
            p.e("s_setprio 0")
            p.wait(vm="kvs", keep=True)
            flag_store(p, GT + 6, 1, 256, ghost=True)
            p.e(f"s_branch {done}")
            p.label(zpath)
            p.wait(vm="zs", keep=True)
            flag_store(p, GT + 6, 1, 128, ghost=True)
            p.label(done)
            stamp(p, 3)
        else:
            st.issue(2)
        sl.run(dm)
    h_phase1(p, st, bars, covers, work, 4)
    if not maker:
        st.free = [15, 16, 17, 18] + st.free
        phase2(p, st, {})
        return
    WO, KI, RI, KB = 32, 96, 128, 64
    p.wait(vm="B3")
    for kk in range(4):
        base = slot(st.slot2[kk])
        for t in range(2):
            f = WO + 8 * kk + 4 * t
            a = VTR + 3 * t + (base >> 16)
            p.lds(f"ds_read_b64_tr_b16 {vr(f,2)}, v{a} offset:{base & 0xFFFF}")
            p.lds(f"ds_read_b64_tr_b16 {vr(f+2,2)}, v{a} offset:{(base & 0xFFFF) + 1024}")
    p.e(f"""v_and_b32 v2, 3, v0
v_lshlrev_b32 v4, 6, v2
v_lshlrev_b32 v2, 12, v2
s_lshr_b32 s{sA}, s{sHD}, 1
s_lshl_b32 s{sB}, s{sW}, 5
s_add_u32 s{sA}, s{sA}, s{sB}
s_lshl_b32 s{sA}, s{sA}, 9
s_and_b32 s{sB}, s{sHD}, 1
s_lshl2_add_u32 s{sA}, s{sB}, s{sA}
s_add_u32 s{sP}, s{sA}, {FLAG_OFF + 128*512:#x}
s_lshl2_add_u32 s{sA}, s{sT}, s{sW}
s_lshl_b32 s{sA}, s{sA}, 13
s_add_u32 s{sP+1}, s{sA}, {KV_OFF:#x}
s_add_u32 s{sP+2}, s{sP+1}, 4096
s_lshl_b32 s{sA}, s{sW}, 7
s_add_u32 s{sA}, s{sA}, s{sT}
s_lshl_b32 s{sA}, s{sA}, 10
s_add_u32 s{sP+3}, s{sA}, {M_OFF:#x}
v_add_u32 v5, {slot(10)}, v1
v_add_u32 v6, s{sM0W}, v5
v_mov_b32 v7, {CNT_OFF}
v_mov_b32 v3, 1""")
    gc = Gate(14, 4, DBG, "0", 0, 64)
    gk = Gate(14, 2, WS, f"s{sP}", 256, 1)
    gc.issue(p)
    gc.check(p)
    gk.issue(p)
    gk.check(p)
    stamp(p, 4)
    for pr in range(2):
        for q in range(4):
            p.vmem(f"buffer_load_dwordx4 {vr(KI + 16*pr + 4*q, 4)}, v255, {WS}, s{sP+1+pr} offen offset:{512*q} sc1", f"ki{pr}{q}")
    for q in range(4):
        p.wait(vm=f"ki1{q}")
        for k in range(0, 4, 2):
            p.e(f"v_pk_add_f32 {vr(KI+4*q+k,2)}, {vr(KI+4*q+k,2)}, {vr(KI+16+4*q+k,2)}")
        p.lds(f"ds_write_b128 v6, {vr(KI+4*q,4)} offset:{ho_off(q)}")
    p.wait_all(lg=True)
    again, ok = uid("lagain"), uid("lok")
    p.e("s_mov_b64 exec, 1\nds_add_u32 v7, v3\ns_mov_b64 exec, -1")
    p.label(again)
    p.e(f"""ds_read_b32 v14, v7
s_waitcnt lgkmcnt(0)
v_cmp_le_u32 vcc, 4, v14
s_cmp_eq_u64 vcc, exec
s_cbranch_scc1 {ok}
s_cmp_eq_u32 s{sSPIN}, 0
s_cbranch_scc1 {ok}
s_sub_u32 s{sSPIN}, s{sSPIN}, 1
s_branch {again}""")
    p.label(ok)
    stamp(p, 5)
    for q in range(4):
        for wp in range(4):
            p.lds(f"ds_read_b128 {vr(RI + 16*q + 4*wp, 4)}, v5 offset:{ho_off(q) + wp*2048}", f"ri{q}")
    for q in range(4):
        b = RI + 16 * q
        p.wait(lg=f"ri{q}")
        for (x, y) in ((0, 4), (8, 12), (0, 8)):
            for k in range(0, 4, 2):
                p.e(f"v_pk_add_f32 {vr(b+x+k,2)}, {vr(b+x+k,2)}, {vr(b+y+k,2)}")
        for k in range(2):
            p.e(f"v_cvt_pk_bf16_f32 v{KB+2*q+k}, v{b+2*k}, v{b+2*k+1}")
    p.e(f"s_mov_b32 exec_lo, 0\nv_mov_b32 v{KB+6}, 0\nv_mov_b32 v{KB+7}, 0\ns_mov_b32 exec_lo, -1\ns_nop 3")
    MD = 128
    for ks in range(2):
        for cb in range(2):
            for t in range(2):
                d = MD + 32 * cb + 16 * t
                p.e(mfma(d, KB + 4 * ks, WO + 8 * (2 * cb + ks) + 4 * t, "0" if ks == 0 else vr(d, 16)))
    last = uid("mlast")
    for cb in range(2):
        if cb == 1:
            p.e(f"s_cmp_eq_u32 s{sW}, 3\ns_cbranch_scc1 {last}")
        for t in range(2):
            d = MD + 32 * cb + 16 * t
            for k in range(8):
                p.e(f"v_add_f32 v{d+k}, v{d+k}, v{d+8+k}")
            for k in range(4):
                p.e(f"v_cvt_pk_bf16_f32 v{d+8+k}, v{d+2*k}, v{d+2*k+1}")
            p.e(f"s_add_u32 s{sA}, s{sP+3}, {(2*cb + t)*32768}")
            p.vmem(f"buffer_store_dwordx4 {vr(d+8,4)}, v1, {WS}, s{sA} offen sc1", "ms")
    p.label(last)
    stamp(p, 6)
    p.wait_all(vm=True)
    flag_store(p, 14, 1, 384)
    finish(p)


def build():
    top = Prog()
    prologue(top)
    m_common(top)
    top.e(f"s_cmp_ge_u32 s{sI}, 4\ns_cbranch_scc1 L_MA")
    mf, ma = Prog(), Prog()
    barsF = prog_MF(mf)
    ma.label("L_MA")
    barsA = prog_MA(ma)
    h = Prog()
    h.label("L_H")
    h_common(h)
    h.e(f"s_cmp_eq_u32 s{sI}, 7\ns_cbranch_scc1 L_HM\ns_cmp_ge_u32 s{sI}, 4\ns_cbranch_scc1 L_HA")
    hf, ha, hm = Prog(), Prog(), Prog()
    prog_HF(hf, barsF)
    ha.label("L_HA")
    prog_HA(ha, barsA, False)
    hm.label("L_HM")
    prog_HA(hm, barsA, True)
    lines = top.lines + mf.lines + ma.lines + h.lines + hf.lines + ha.lines + hm.lines + ["L_end:", "s_endpgm"]
    lines, npad = pad(lines)
    head = open(f"cdna_kernels/{NAME}.s.ref").read().split("; Override launch")[0]
    txt = head + "; @launch grid=(256,1,1) block=(512,1,1) lds=163840\n"
    txt += f""".amdgcn_target "amdgcn-amd-amdhsa--gfx950"
.text
.globl {NAME}_kernel
.p2align 8
.type {NAME}_kernel,@function
{NAME}_kernel:
"""
    txt += "\n".join(l if l.endswith(":") else "    " + l for l in lines) + "\n"
    txt += f""".section .rodata,"a"
.p2align 6
.amdhsa_kernel {NAME}_kernel
  .amdhsa_next_free_vgpr 256
  .amdhsa_next_free_sgpr 102
  .amdhsa_accum_offset 256
  .amdhsa_group_segment_fixed_size 0
  .amdhsa_kernarg_size 88
  .amdhsa_user_sgpr_count 2
  .amdhsa_user_sgpr_kernarg_segment_ptr 1
  .amdhsa_system_sgpr_workgroup_id_x 1
.end_amdhsa_kernel
"""
    return txt, npad, (barsF, barsA)


if __name__ == "__main__":
    out = sys.argv[1]
    for a in sys.argv[2:]:
        k, v = a.split("=")
        assert k in OPT, k
        OPT[k] = int(v)
    txt, npad, bars = build()
    open(out, "w").write(txt)
    print(f"wrote {out}: {txt.count(chr(10))} lines, {npad} pads")
```

```python
import math
import sys
from asmlib import Prog, f32, vr, sr, pad

NAME = "parallel_sum__linear_attn_block__dense_activation_gelu__prompt"
OPT = dict(diag_hold=0, stamps=0, la=5, p2la=6, exact_r=0, rot=1, codepf=1)

H_OFF, PQ_OFF, M_OFF, KV_OFF, Z_OFF, FLAG_OFF, STAMP_OFF, WS_SZ = (
    0x0, 0x700000, 0x900000, 0x980000, 0xA80000, 0xA90000, 0xB00000, 0xC00000)
NRING = 15
def slot(i): return 8192 + 8192 * i
XBASE = slot(5)
HO = slot(15)
CNT_OFF = 1024
GA = 2.0 * math.sqrt(2.0 / math.pi) * math.log2(math.e)
GS = (GA * 0.044715) ** (1.0 / 3.0)
LOG2E = math.log2(math.e)
sWAVE, sW, sR, sU, sI = 3, 4, 5, 6, 7
X, WA, WB, WS, OUT, DBG, BIAS = (sr(a, 4) for a in (8, 12, 16, 20, 24, 28, 32))
sKL, sRHO, sT, sA, sB, sC, sFLAG, sSPIN = 58, 65, 66, 67, 68, 69, 70, 71
sK0, sK1, sK2 = 72, 73, 74
sM0W = 75
sP = 36
_uid = [0]


def uid(s):
    _uid[0] += 1
    return f"L{s}{_uid[0]}"


def srd(p, a, ptr, size):
    p.e(f"s_mov_b32 s{a}, s{ptr}\ns_mov_b32 s{a+1}, s{ptr+1}\ns_mov_b32 s{a+2}, {size:#x}\ns_mov_b32 s{a+3}, 0x20000")


def stamp(p, k):
    if OPT["stamps"]:
        p.e(f"s_memtime s[{80+2*k}:{81+2*k}]")


def finish(p):
    if OPT["diag_hold"]:
        l = uid("hold")
        p.label(l)
        p.e(f"s_memrealtime s[98:99]\ns_waitcnt lgkmcnt(0)\ns_sub_u32 s98, s98, s100\ns_cmp_lt_u32 s98, {OPT['diag_hold']}\ns_cbranch_scc1 {l}")
    if OPT["stamps"]:
        stamp(p, 9)
        p.e("s_waitcnt lgkmcnt(0)")
        p.e(f"s_lshl_b32 s{sA}, s2, 3\ns_add_u32 s{sA}, s{sA}, s{sWAVE}\ns_lshl_b32 s{sA}, s{sA}, 6\ns_add_u32 s{sA}, s{sA}, {STAMP_OFF:#x}")
        p.e("s_mov_b64 exec, 1")
        for k in range(11):
            p.e(f"v_mov_b32 v2, s{80+2*k}\nbuffer_store_dword v2, off, {WS}, s{sA} offset:{4*k}\ns_nop 1")
    p.e("s_endpgm")


def kl_table(p, mul, base=None):
    for g in range(7):
        p.e(f"s_add_u32 s{sA}, s{sRHO}, {g}\ns_cmp_ge_u32 s{sA}, 7\ns_cselect_b32 s{sB}, 7, 0\ns_sub_u32 s{sA}, s{sA}, s{sB}")
        p.e(f"s_mul_i32 s{sKL+g}, s{sA}, {mul}")
        if base is not None:
            p.e(f"s_add_u32 s{sKL+g}, s{sKL+g}, s{base}")


def flag_store(p, vtmp, val, imm, ghost=False):
    p.e(f"v_mov_b32 v{vtmp}, {val}\ns_mov_b64 exec, 1")
    p.vmem(f"buffer_store_dword v{vtmp}, off, {WS}, s{sFLAG} offset:{imm} sc1", "flag", ghost)
    p.e("s_mov_b64 exec, -1")


class Gate:
    def __init__(self, vd, va, rs, soff, imm, want):
        self.vd, self.want = vd, want
        self.ld = f"buffer_load_dword v{vd}, v{va}, {rs}, {soff} offen offset:{imm} sc1"
        self.tag = uid("gate")

    def issue(self, p):
        p.vmem(self.ld, self.tag)

    def check(self, p):
        p.wait(vm=self.tag)
        again, ok = uid("again"), uid("ok")
        p.label(again)
        p.e(f"v_cmp_le_u32 vcc, {self.want}, v{self.vd}\ns_cmp_eq_u64 vcc, exec\ns_cbranch_scc1 {ok}")
        p.e(f"s_cmp_eq_u32 s{sSPIN}, 0\ns_cbranch_scc1 {ok}\ns_sub_u32 s{sSPIN}, s{sSPIN}, 1")
        p.e(f"{self.ld}\ns_waitcnt vmcnt(0)\ns_branch {again}")
        p.label(ok)


def gelu_ops(vin, n, vt, vout):
    ops = []
    for g in range(0, n, 4):
        w = [vin + g + k for k in range(4)]
        t = [vt + k for k in range(4)]
        ops += [(f"v_fma_f32 v{t[k]}, -v{w[k]}, v{w[k]}, s{sK0}", 4, None) for k in range(4)]
        ops += [(f"v_mul_f32 v{t[k]}, v{w[k]}, v{t[k]}", 4, None) for k in range(4)]
        ops += [(f"v_exp_f32 v{t[k]}, v{t[k]}", 8, None) for k in range(4)]
        ops += [(f"v_add_f32 v{t[k]}, 1.0, v{t[k]}", 4, None) for k in range(4)]
        ops += [(f"v_rcp_f32 v{t[k]}, v{t[k]}", 8, None) for k in range(4)]
        ops += [(f"v_mul_f32 v{t[k]}, v{w[k]}, v{t[k]}", 4, None) for k in range(4)]
        ops += [(f"v_cvt_pk_bf16_f32 v{vout + g//2 + k}, v{t[2*k]}, v{t[2*k+1]}", 4, g // 2 + k) for k in range(2)]
    return ops


def phi_ops(vin, n, vt):
    ops = []
    for g in range(0, n, 4):
        w = [vin + g + k for k in range(4)]
        t = [vt + k for k in range(4)]
        ops += [(f"v_fma_f32 v{t[k]}, v{w[k]}, s{sK0}, v{vt+4}", 4, None) for k in range(4)]
        ops += [(f"v_exp_f32 v{t[k]}, v{t[k]} clamp", 8, None) for k in range(4)]
        ops += [(f"v_max_f32 v{w[k]}, s{sK1}, v{w[k]}", 4, None) for k in range(4)]
        ops += [(f"v_add_f32 v{w[k]}, v{w[k]}, v{t[k]}", 4, None) for k in range(4)]
    return ops


def phi_consts(p, vt):
    p.e(f"s_mov_b32 s{sK0}, {f32(LOG2E):#x}\ns_mov_b32 s{sK1}, {f32(1e-6):#x}\nv_mov_b32 v{vt+4}, {f32(-1e-6*LOG2E):#x}")


def mfma(d, a, b, c):
    return f"v_mfma_f32_32x32x16_bf16 {vr(d,16)}, {vr(a,4)}, {vr(b,4)}, {c}"


def tr_lane_addr(p, vd, vt, rowmul, colbyte, swz):
    p.e(f"""v_lshrrev_b32 v{vt}, 5, v0
v_mul_u32_u24 v{vt}, {rowmul}, v{vt}
v_bfe_u32 v{vt+1}, v0, 2, 2
v_add_u32 v{vt}, v{vt}, v{vt+1}
v_lshlrev_b32 v{vt}, {7 if swz else 6}, v{vt}
v_bfe_u32 v{vt+1}, v0, 4, 1
v_lshlrev_b32 v{vt+1}, 5, v{vt+1}
v_and_b32 v{vd}, 3, v0
v_lshl_add_u32 v{vd}, v{vd}, 3, v{vt+1}""")
    if colbyte:
        p.e(f"v_add_u32 v{vd}, {colbyte}, v{vd}")
    if swz:
        p.e(f"v_bfe_u32 v{vt+1}, v0, 3, 1\nv_lshlrev_b32 v{vt+1}, 6, v{vt+1}\nv_xor_b32 v{vd}, v{vd}, v{vt+1}")
    p.e(f"v_add_u32 v{vd}, v{vd}, v{vt}")


def prologue(p):
    p.e(f"""s_cmp_ge_u32 s2, 256
s_cbranch_scc1 L_end
s_load_dwordx16 s[36:51], s[0:1], 0
s_load_dwordx4 s[52:55], s[0:1], 64
s_load_dwordx2 s[56:57], s[0:1], 80""")
    if OPT["stamps"] or OPT["diag_hold"]:
        p.e("s_memrealtime s[100:101]")
    stamp(p, 0)
    p.e(f"""v_lshrrev_b32 v1, 6, v0
v_and_b32 v0, 63, v0
v_readfirstlane_b32 s{sWAVE}, v1
v_lshlrev_b32 v1, 4, v0
s_bfe_u32 s{sA}, s2, 0x20001
s_and_b32 s{sB}, s2, 1
s_bfe_u32 s{sC}, s2, 0x20003
s_lshr_b32 s{sI}, s2, 5
s_lshl2_add_u32 s{sR}, s{sA}, s{sC}
s_and_b32 s{sU}, s{sI}, 3
s_lshl2_add_u32 s{sU}, s{sB}, s{sU}
s_and_b32 s{sT}, s2, 7
s_lshl2_add_u32 s{sT}, s{sT}, s{sC}
s_and_b32 s{sW}, s{sWAVE}, 3
s_lshl_b32 s{sM0W}, s{sW}, 11""")
    if OPT["rot"]:
        p.e(f"""s_lshl1_add_u32 s{sRHO}, s{sC}, s{sI}
s_lshl2_add_u32 s{sRHO}, s{sB}, s{sRHO}
s_add_u32 s{sRHO}, s{sRHO}, s{sA}
s_mul_i32 s{sA}, s{sRHO}, 37
s_lshr_b32 s{sA}, s{sA}, 8
s_mul_i32 s{sA}, s{sA}, 7
s_sub_u32 s{sRHO}, s{sRHO}, s{sA}""")
    else:
        p.e(f"s_mov_b32 s{sRHO}, 0")
    p.e(f"""s_lshr_b32 s{sA}, s{sI}, 2
s_lshl4_add_u32 s{sA}, s{sA}, s{sR}
s_lshl3_add_u32 s{sA}, s{sA}, s{sU}
s_lshl_b32 s{sA}, s{sA}, 9
s_lshl2_add_u32 s{sA}, s{sW}, s{sA}
s_add_u32 s{sFLAG}, s{sA}, {FLAG_OFF:#x}
s_mov_b32 s{sSPIN}, 0x40000
s_cmp_ge_u32 s{sWAVE}, 4
s_cbranch_scc1 L_H""")


XN, ACC, FR, MT = 16, (128, 160), 192, 216
NFR = 6


def m_common(p):
    p.e(f"""v_lshrrev_b32 v10, 3, v0
v_lshrrev_b32 v11, 4, v0
v_and_b32 v12, 7, v0
v_xor_b32 v12, v12, v11
v_mul_u32_u24 v10, 896, v10
v_lshl_add_u32 v2, v12, 4, v10
v_xor_b32 v3, 64, v2
v_add_u32 v3, {8*896-1024}, v3
v_add_u32 v4, {2*(8*896-1024)}, v2
v_add_u32 v5, {2*(8*896-1024)}, v3
s_lshl2_add_u32 s{sC}, s{sR}, s{sW}
s_mul_i32 s{sC}, s{sC}, {32*896}""")
    kl_table(p, 128, sC)
    p.e(f"s_mul_i32 s{sC}, s{sW}, 28672\ns_add_u32 s{sC}, s{sC}, {XBASE}")
    p.e("s_waitcnt lgkmcnt(0)")
    srd(p, 8, 36, 2048 * 896)

    def xdma(g):
        p.e(f"s_add_u32 m0, s{sC}, {g*4096}")
        for b in range(4):
            p.vmem(f"buffer_load_dwordx4 v{2+b}, {X}, s{sKL+g} offen offset:{b*1024} lds", f"x{g}")
    for g in range(3):
        xdma(g)
    stamp(p, 1)
    srd(p, 20, 56, WS_SZ)
    srd(p, 24, 52, 2048 * 896)
    srd(p, 28, 54, 256)
    srd(p, 32, 50, 896)
    p.e(f"""v_and_b32 v10, 31, v0
v_lshlrev_b32 v11, 7, v10
v_bfe_u32 v12, v10, 1, 3
v_lshrrev_b32 v13, 5, v0
v_xor_b32 v12, v12, v13
v_lshl_add_u32 v6, v12, 4, v11
v_add_u32 v6, s{sC}, v6
v_xor_b32 v7, 32, v6
v_xor_b32 v8, 64, v6
v_xor_b32 v9, 0x60, v6
s_mov_b32 s{sK0}, 0x3f803f80""")
    for k in range(4):
        p.e(f"v_mov_b32 v{MT+k}, 0")

    def stats(g):
        for d in range(16):
            x = XN + 16 * g + d
            if d % 4 == 0:
                p.wait(lg=f"xf{g}_{d//4}")
            p.e(f"v_dot2c_f32_bf16 v{MT + (d&1)}, s{sK0}, v{x}\nv_dot2c_f32_bf16 v{MT + 2 + (d&1)}, v{x}, v{x}")
    for g in range(7):
        p.wait(vm=f"x{g}")
        for j in range(4):
            p.lds(f"ds_read_b128 {vr(XN + 16*g + 4*j, 4)}, v{6+j} offset:{g*4096}", f"xf{g}_{j}")
        if g + 3 < 7:
            xdma(g + 3)
        if g == 3:
            p.e("s_barrier")
        if g == 6:
            p.wait_all(lg=True)
            p.e("s_barrier")
            stamp(p, 2)
        stats(g)
    a, b, c, d = MT, MT + 1, MT + 2, MT + 3
    RLO, RHI, CC = MT + 4, MT + 5, MT + 6
    p.e(f"""s_cmp_ge_u32 s{sI}, 4
s_cselect_b32 s{sK1}, 1.0, {f32(GS):#x}
v_add_f32 v{a}, v{a}, v{b}
v_add_f32 v{c}, v{c}, v{d}
v_mov_b32 v{b}, v{a}
v_mov_b32 v{d}, v{c}
v_permlane32_swap_b32 v{a}, v{b}
v_permlane32_swap_b32 v{c}, v{d}
v_add_f32 v{a}, v{a}, v{b}
v_add_f32 v{c}, v{c}, v{d}
v_mul_f32 v{a}, {f32(1/448):#x}, v{a}
v_mul_f32 v{c}, {f32(1/448):#x}, v{c}
v_fma_f32 v{c}, -v{a}, v{a}, v{c}
v_max_f32 v{c}, 0, v{c}
v_cvt_pk_bf16_f32 v{b}, v{a}, v{c}
v_lshlrev_b32 v{a}, 16, v{b}
v_and_b32 v{c}, 0xffff0000, v{b}
v_add_f32 v{c}, {f32(1e-5):#x}, v{c}
v_cvt_pk_bf16_f32 v{c}, v{c}, v{c}
v_lshlrev_b32 v{c}, 16, v{c}
v_sqrt_f32 v{c}, v{c}
v_cvt_pk_bf16_f32 v{c}, v{c}, v{c}
v_lshlrev_b32 v{c}, 16, v{c}
v_rcp_f32 v{c}, v{c}
v_mul_f32 v{c}, s{sK1}, v{c}""")
    T0 = MT + 8
    if OPT["exact_r"]:
        p.e(f"v_mov_b32 v{RLO}, v{c}\nv_mul_f32 v{CC}, -v{a}, v{c}")
        for i in range(112):
            x, t = XN + i, T0 + 2 * (i % 4)
            p.e(f"v_lshlrev_b32 v{t}, 16, v{x}\nv_and_b32 v{t+1}, 0xffff0000, v{x}")
            p.e(f"v_pk_fma_f32 {vr(t,2)}, {vr(t,2)}, {vr(RLO,2)}, {vr(CC,2)} op_sel_hi:[1,0,0]")
            p.e(f"v_cvt_pk_bf16_f32 v{x}, v{t}, v{t+1}")
    else:
        p.e(f"""v_cvt_pk_bf16_f32 v{RLO}, v{c}, v{c}
v_and_b32 v{RHI}, 0xffff0000, v{RLO}
v_lshrrev_b32 v{RLO}, 16, v{RLO}
v_mul_f32 v{CC}, -v{a}, v{RHI}""")
        for i in range(112 + 2):
            if i < 112:
                x, t = XN + i, T0 + 2 * (i % 4)
                p.e(f"v_dot2_f32_bf16 v{t}, v{x}, v{RLO}, v{CC}\nv_dot2_f32_bf16 v{t+1}, v{x}, v{RHI}, v{CC}")
            if i >= 2:
                t = T0 + 2 * ((i - 2) % 4)
                p.e(f"v_cvt_pk_bf16_f32 v{XN+i-2}, v{t}, v{t+1}")
    stamp(p, 3)


def m_loop(p, ops, bar_stage, hooks, bars):
    LA = OPT["la"]
    n = len(ops)

    def rd(i):
        o = ops[i]
        if (i == 0 or ops[i - 1]["stage"] != o["stage"]) and o["stage"] in bar_stage:
            p.e("s_barrier")
            bars.append((f"b{o['stage']}", max(i - LA, 0)))
        f = FR + 4 * (i % NFR)
        a = o["areg"] + (o["off"] >> 16)
        off = o["off"] & 0xFFFF
        p.lds(f"ds_read_b64_tr_b16 {vr(f,2)}, v{a} offset:{off}", f"f{i}")
        p.lds(f"ds_read_b64_tr_b16 {vr(f+2,2)}, v{a} offset:{off + o['step']}", f"f{i}")
    for i in range(LA):
        rd(i)
    for i in range(n):
        o = ops[i]
        p.wait(lg=[f"f{i}", o.get("need")])
        f = FR + 4 * (i % NFR)
        a, b = (o["xn"], f) if o["swap"] else (f, o["xn"])
        p.e(mfma(o["acc"], a, b, o["c"]))
        if i + LA < n:
            rd(i + LA)
        for h in hooks.get(i, []):
            h()


def full_pass_ops(ps, accset, c0, swap, need=None):
    ops = []
    for s in range(7):
        g = 7 * ps + s
        for ks in range(4):
            for t in range(2):
                acc = ACC[accset] + 16 * t
                first = s == 0 and ks == 0
                ops.append(dict(stage=g, areg=2 + 2 * t, off=slot(g % NRING) + ks * 2048, step=512, acc=acc,
                                xn=XN + 16 * s + 4 * ks, c=(c0 or vr(acc, 16)) if first else vr(acc, 16), swap=swap,
                                need=need if first else None))
    return ops


def add(hooks, i, f):
    hooks.setdefault(i, []).append(f)


def bar_hook(p, bars, name, i, lg):
    def f():
        p.wait(lg=lg)
        p.e("s_barrier")
        bars.append((name, i))
    return f


def m_addr(p, col1):
    tr_lane_addr(p, 2, 10, 8, 0, True)
    tr_lane_addr(p, 4, 10, 8, col1, True)
    p.e(f"v_add_u32 v3, 0x10000, v2\nv_add_u32 v5, 0x10000, v4\nv_add_u32 v8, s{sM0W}, v1\nv_add_u32 v8, {HO}, v8")


def ho_off(blk):
    return (blk >> 1) * 8192 + (blk & 1) * 1024


def m_final(p):
    p.e(f"""v_lshrrev_b32 v10, 3, v0
v_and_b32 v11, 7, v0
v_lshlrev_b32 v12, 4, v11
v_mul_u32_u24 v13, 896, v10
v_add_u32 v13, v13, v12
s_lshl3_add_u32 s{sA}, s{sT}, s{sW}
s_mul_i32 s{sA}, s{sA}, {8*896}
s_lshl_b32 s{sB}, s{sI}, 7
s_add_u32 s{sA}, s{sA}, s{sB}
s_add_u32 s{sC}, s{sA}, {32*896}""")
    p.vmem(f"buffer_load_dwordx4 v[16:19], v13, {X}, s{sA} offen", "res")
    p.vmem(f"buffer_load_dwordx4 v[20:23], v13, {X}, s{sC} offen", "res")
    p.vmem(f"buffer_load_dwordx4 v[24:27], v12, {BIAS}, s{sB} offen", "res")
    p.e(f"""s_and_b32 s{sP}, s{sW}, 1
s_lshl_b32 s{sP}, s{sP}, 3
v_or_b32 v14, s{sP}, v10
v_lshlrev_b32 v15, 1, v11
v_xor_b32 v14, v14, v15
v_lshlrev_b32 v14, 4, v14
v_lshl_add_u32 v14, v10, 8, v14
s_lshl_b32 s{sP}, s{sW}, 13
s_add_u32 s{sP}, s{sP}, {slot(0)}
v_add_u32 v14, s{sP}, v14
v_xor_b32 v15, 16, v14
s_mov_b32 s{sK0}, {f32(1/GS):#x}""")
    p.wait(vm="res")
    for k in range(4):
        p.e(f"v_lshlrev_b32 v{28+2*k}, 16, v{24+k}\nv_and_b32 v{29+2*k}, 0xffff0000, v{24+k}")
    for it in range(2):
        for k in range(4):
            d = 36 + 8 * it + 2 * k
            p.e(f"v_lshlrev_b32 v{d}, 16, v{16+4*it+k}\nv_and_b32 v{d+1}, 0xffff0000, v{16+4*it+k}")
            p.e(f"v_add_f32 v{d}, v{d}, v{28+2*k}\nv_add_f32 v{d+1}, v{d+1}, v{29+2*k}")
    stamp(p, 7)
    p.e("s_barrier")
    stamp(p, 8)
    for it in range(2):
        for wp in range(4):
            for j in range(2):
                p.lds(f"ds_read_b128 {vr(64 + 32*it + 8*wp + 4*j, 4)}, v{14+j} offset:{it*32768 + wp*2048}", f"r{it}_{wp}")
    for it in range(2):
        b = 64 + 32 * it
        p.wait(lg=f"r{it}_1")
        for k in range(0, 8, 2):
            p.e(f"v_pk_add_f32 {vr(b+k,2)}, {vr(b+k,2)}, {vr(b+8+k,2)}")
        p.wait(lg=f"r{it}_3")
        for k in range(0, 8, 2):
            p.e(f"v_pk_add_f32 {vr(b+16+k,2)}, {vr(b+16+k,2)}, {vr(b+24+k,2)}")
        for k in range(0, 8, 2):
            p.e(f"v_pk_add_f32 {vr(b+k,2)}, {vr(b+k,2)}, {vr(b+16+k,2)}")
        for k in range(8):
            p.e(f"v_fma_f32 v{b+k}, v{b+k}, s{sK0}, v{36+8*it+k}")
        for k in range(4):
            p.e(f"v_cvt_pk_bf16_f32 v{b+8+k}, v{b+2*k}, v{b+2*k+1}")
        p.vmem(f"buffer_store_dwordx4 {vr(b+8,4)}, v13, {OUT}, s{sA if it == 0 else sC} offen", "out")
    finish(p)


def prog_MF(p):
    bars, hooks = [], {}
    m_addr(p, 64)
    tr_lane_addr(p, 6, 10, 8, 0, False)
    p.e("v_add_u32 v7, 0x10000, v6\nv_lshrrev_b32 v9, 5, v0\nv_lshlrev_b32 v9, 4, v9")

    def bias_rd(ps, blk):
        return lambda: p.lds(f"ds_read_b128 {vr(ACC[ps % 2] + 4*blk, 4)}, v9 offset:{(64*ps + 8*blk)*4}", f"bias{ps}")

    def ho_wr(ps, blk):
        return lambda: p.lds(f"ds_write_b128 v8, {vr(ACC[ps % 2] + 4*blk, 4)} offset:{ho_off(blk)}", f"ho{ps}")
    for blk in range(8):
        bias_rd(0, blk)()
    ops = []
    for ps in range(3):
        ops += full_pass_ops(ps, ps % 2, None, False, need=f"bias{ps}")
    acc = ACC[1]
    for s in range(7):
        g = 21 + s // 2
        for ks in range(4):
            ops.append(dict(stage=g, areg=6, off=slot(g % NRING) + ks * 2048 + (s & 1) * 1024, step=256, acc=acc,
                            xn=XN + 16 * s + 4 * ks, c=vr(acc, 16), swap=False, need="bias3" if s == 0 and ks == 0 else None))
    for ps in range(3):
        n = 56 * (ps + 1)
        for blk in range(8):
            add(hooks, n + 1 + blk // 2, ho_wr(ps, blk))
        add(hooks, n + 6, bar_hook(p, bars, f"ho{ps}", n + 6, f"ho{ps}"))
        for blk in range(8 if ps < 2 else 4):
            add(hooks, 56 * ps + 24 + blk, bias_rd(ps + 1, blk))
    if OPT["stamps"]:
        add(hooks, 55, lambda: stamp(p, 4))
    m_loop(p, ops, set(range(23)), hooks, bars)
    p.e("s_barrier")
    bars.append(("bG", len(ops)))
    stamp(p, 5)
    p.e(f"""s_mov_b32 s{sK0}, {f32(-GA/GS):#x}
s_lshl2_add_u32 s{sA}, s{sR}, s{sW}
s_mul_i32 s{sA}, s{sA}, 56
s_mul_i32 s{sB}, s{sU}, 7
s_add_u32 s{sA}, s{sA}, s{sB}
s_bitcmp1_b32 s{sU}, 0
s_cselect_b32 s{sB}, 0, 6
s_add_u32 s{sA}, s{sA}, s{sB}
s_lshl_b32 s{sA}, s{sA}, 11""")
    for txt, _, o in gelu_ops(acc, 16, MT, MT + 8):
        p.e(txt)
        if o is not None and o % 4 == 3:
            p.vmem(f"buffer_store_dwordx4 {vr(MT + 8 + o - 3, 4)}, v1, {WS}, s{sA} offen offset:{(o//4)*1024} sc1", "hst")
    p.wait(vm="hst")
    flag_store(p, 2, 3, 16)
    stamp(p, 6)
    m_final(p)
    return bars


def prog_MA(p):
    bars, hooks = [], {}
    m_addr(p, 56)
    EPS = 232
    for k in range(16):
        p.e(f"v_mov_b32 v{EPS+k}, {f32(1e-6):#x}")
    ops = full_pass_ops(0, 0, vr(EPS, 16), True) + full_pass_ops(1, 1, "0", True) + full_pass_ops(2, 0, vr(EPS, 16), False)
    for blk in range(8):
        add(hooks, 57 + blk // 2, (lambda b: lambda: p.lds(f"ds_write_b128 v8, {vr(ACC[0] + 4*b, 4)} offset:{ho_off(b)}", "hoK"))(blk))
    add(hooks, 62, bar_hook(p, bars, "hoK", 62, "hoK"))

    def v_wr(b):
        def f():
            for k in range(4):
                p.e(f"v_cvt_pk_bf16_f32 v{MT + 4*b + k}, v{ACC[1] + 8*b + 2*k}, v{ACC[1] + 8*b + 2*k + 1}")
            p.lds(f"ds_write_b128 v8, {vr(MT + 4*b, 4)} offset:{ho_off(4 + b)}", "hoV")
        return f
    for b in range(4):
        add(hooks, 113 + b, v_wr(b))
    add(hooks, 118, bar_hook(p, bars, "hoV", 118, "hoV"))
    gc = Gate(12, 13, DBG, "0", 0, 64)
    gz = Gate(14, 15, WS, f"s{sP}", 128, 1)
    ZF = ACC[1]

    def z_issue():
        p.e(f"""v_and_b32 v13, 3, v0
v_lshlrev_b32 v13, 6, v13
v_and_b32 v15, 15, v0
v_lshlrev_b32 v15, 12, v15
v_bfe_u32 v14, v0, 4, 1
v_lshl_add_u32 v15, v14, 2, v15
s_lshl_b32 s{sP}, s{sU}, 9
s_add_u32 s{sP}, s{sP}, {FLAG_OFF + 128*512 + 8:#x}""")
        gc.issue(p)
    add(hooks, 125, z_issue)
    add(hooks, 150, lambda: (gc.check(p), gz.issue(p)))
    if OPT["stamps"]:
        add(hooks, 55, lambda: stamp(p, 4))
    m_loop(p, ops, set(range(16)), hooks, bars)
    p.e("s_barrier")
    bars.append(("bG", len(ops)))
    stamp(p, 5)
    p.e(f"""v_and_b32 v10, 31, v0
v_lshlrev_b32 v11, 6, v10
v_lshrrev_b32 v13, 5, v0
v_lshl_add_u32 v11, v13, 4, v11
v_mov_b32 v13, 0x7f000000
v_cmp_gt_u32 vcc, 16, v10
v_cndmask_b32 v11, v13, v11, vcc
s_lshl_b32 s{sP+1}, s{sU}, 11
s_add_u32 s{sP+1}, s{sP+1}, {Z_OFF:#x}""")
    gz.check(p)
    for hh in range(2):
        for ks in range(2):
            p.vmem(f"buffer_load_dwordx4 {vr(ZF + 8*hh + 4*ks, 4)}, v11, {WS}, s{sP+1} offen offset:{hh*1024 + ks*32} sc1", "z")
    Q = ACC[0]
    phi_consts(p, MT)
    for txt, _, _ in phi_ops(Q, 32, MT):
        p.e(txt)
    p.e("s_mov_b32 exec_lo, 0")
    for hh in range(2):
        for k in range(4):
            p.e(f"v_mov_b32 v{Q + 16*hh + 12 + k}, 0")
    p.e("s_mov_b32 exec_lo, -1")
    PB, DN = ZF + 16, 16
    for k in range(16):
        p.e(f"v_cvt_pk_bf16_f32 v{PB+k}, v{Q+2*k}, v{Q+2*k+1}")
    p.wait(vm="z")
    for ks in range(2):
        for hh in range(2):
            d = DN + 16 * hh
            p.e(mfma(d, ZF + 8 * hh + 4 * ks, PB + 8 * hh + 4 * ks, "0" if ks == 0 else vr(d, 16)))
    p.e(f"""s_lshl2_add_u32 s{sA}, s{sR}, s{sW}
s_lshl3_add_u32 s{sA}, s{sA}, s{sU}
s_lshl_b32 s{sA}, s{sA}, 12
s_add_u32 s{sA}, s{sA}, {PQ_OFF:#x}""")
    for w in (4, 2, 1):
        for k in range(w):
            for hh in range(2):
                d = DN + 16 * hh
                p.e(f"v_add_f32 v{d+k}, v{d+k}, v{d+k+w}")
    for hh in range(2):
        p.e(f"v_mov_b32 v{DN+16*hh+1}, v{DN+16*hh}")
    for hh in range(2):
        p.e(f"v_permlane32_swap_b32 v{DN+16*hh}, v{DN+16*hh+1}")
    for step in (lambda d: f"v_add_f32 v{d}, v{d}, v{d+1}", lambda d: f"v_add_f32 v{d}, s{sK1}, v{d}",
                 lambda d: f"v_rcp_f32 v{d}, v{d}", lambda d: f"v_mul_f32 v{d}, {f32(GS):#x}, v{d}"):
        for hh in range(2):
            p.e(step(DN + 16 * hh))
    for b in range(4):
        for k in range(8):
            p.e(f"v_mul_f32 v{Q+8*b+k}, v{DN + 16*(b//2)}, v{Q+8*b+k}")
        for k in range(4):
            p.e(f"v_cvt_pk_bf16_f32 v{PB+4*b+k}, v{Q+8*b+2*k}, v{Q+8*b+2*k+1}")
        p.vmem(f"buffer_store_dwordx4 {vr(PB+4*b,4)}, v1, {WS}, s{sA} offen offset:{b*1024} sc1", "pq")
    p.wait(vm="pq")
    flag_store(p, 2, 1, 0)
    stamp(p, 6)
    p.e(f"s_cmp_lg_u32 s{sI}, 7\ns_cbranch_scc1 L_MA_fin")
    finish(p)
    p.label("L_MA_fin")
    m_final(p)
    return bars


VW0, VW1, VWH, VB0, VB1, VHO = 2, 3, 4, 5, 6, 7
VTR = 8
VL = 248
P2ACC, P2W = 16, 80
GIN, GOUT, GT = 160, 192, 208
sCOL, sCB = 76, 77
P2_TILES = [0, 1, 8, 9, 2, 3, 10, 11, 4, 5, 12, 13, 6, 7]


def h_common(p):
    p.e(f"""v_and_b32 v10, 7, v0
v_bfe_u32 v11, v0, 4, 1
v_lshlrev_b32 v11, 2, v11
v_xor_b32 v14, v10, v11
v_lshrrev_b32 v15, 3, v0
s_waitcnt lgkmcnt(0)""")
    srd(p, 20, 56, WS_SZ)
    srd(p, 28, 54, 256)
    srd(p, 32, 46, 3584)
    skip = uid("noclr")
    p.e(f"""s_cmp_lg_u32 s{sW}, 0
s_cbranch_scc1 {skip}
v_mov_b32 v16, 0
v_mov_b32 v17, 0
v_mov_b32 v18, 0
v_mov_b32 v19, 0
v_mov_b32 v20, 1
v_mov_b32 v21, {CNT_OFF}
s_mov_b32 exec_hi, 0
buffer_store_dwordx4 v[16:19], v1, {WS}, s{sFLAG} offen sc1
ds_write_b32 v21, v16
s_and_b32 s{sA}, s2, 3
s_lshl_b32 s{sA}, s{sA}, 6
s_mov_b32 exec_lo, 1
s_waitcnt vmcnt(0) lgkmcnt(0)
buffer_atomic_add v20, off, {DBG}, s{sA} sc1
s_mov_b64 exec, -1""")
    p.label(skip)
    if OPT["codepf"]:
        skip = uid("nopf")
        p.e(f"""s_cmp_lt_u32 s{sW}, 2
s_cbranch_scc1 {skip}
s_getpc_b64 s[78:79]""")
        p.label("L_pc")
        p.e(f"""s_sub_u32 s78, s78, L_pc-{NAME}_kernel
s_subb_u32 s79, s79, 0
s_lshr_b32 s{sA}, s2, 3
s_lshl1_add_u32 s{sA}, s{sA}, s{sW}
s_sub_u32 s{sA}, s{sA}, 2
s_lshl_b32 s{sA}, s{sA}, 10
s_min_u32 s{sA}, s{sA}, L_end-{NAME}_kernel-1024
v_add_u32 v16, s{sA}, v1
global_load_dwordx4 v[244:247], v16, s[78:79]""")
        p.label(skip)
    p.e(f"v_add_u32 v{VHO}, s{sM0W}, v1\nv_add_u32 v{VHO}, {HO}, v{VHO}")
    for t in range(2):
        tr_lane_addr(p, VTR + 3 * t, 16, 4, 64 * t, True)
        p.e(f"v_add_u32 v{VTR+3*t}, s{sM0W}, v{VTR+3*t}")
        p.e(f"v_add_u32 v{VTR+3*t+1}, 0x10000, v{VTR+3*t}\nv_add_u32 v{VTR+3*t+2}, 0x20000, v{VTR+3*t}")


def w_lane(p, v0_, v1_, pitch, srow, cap):
    if cap:
        p.e("v_min_u32 v16, 6, v14")
    else:
        p.e("v_mov_b32 v16, v14")
    p.e(f"v_add_u32 v17, s{srow}, v15\nv_mul_u32_u24 v17, {pitch}, v17\nv_lshl_add_u32 v{v0_}, v16, 4, v17")
    p.e(f"v_add_u32 v{v1_}, {8*pitch - 1024}, v{v0_}")


class Stream:
    def __init__(self, p, G, issue1, nB, issue2):
        self.p, self.G, self.issue1, self.nB, self.issue2 = p, G, issue1, nB, issue2
        self.next = 0
        self.freed = -1
        self.xfree = False
        self.free = []
        self.slot2 = {}

    def release(self, g):
        for k in range(self.freed + 1, min(g, self.G - 1) + 1):
            if k + NRING >= self.G:
                self.free.append(k % NRING)
        self.freed = max(self.freed, g)

    def can(self):
        g = self.next
        if g < self.G:
            return (g < 5) or (self.xfree and g - NRING <= self.freed)
        return g - self.G < self.nB and bool(self.free)

    def issue(self, n=99):
        k = 0
        while k < n and self.can():
            g = self.next
            if g < self.G:
                self.issue1(g, slot(g % NRING))
            else:
                s = self.free.pop(0)
                self.slot2[g - self.G] = s
                self.issue2(g - self.G, slot(s))
            self.next += 1
            k += 1
        return k


def dma_pair(p, rs, va, vb, base, tag):
    p.e(f"s_add_u32 m0, s{sM0W}, {base}")
    p.vmem(f"buffer_load_dwordx4 v{va}, {rs}, s{sA} offen lds", tag)
    p.vmem(f"buffer_load_dwordx4 v{vb}, {rs}, s{sA} offen offset:1024 lds", tag)


def w2_issue(p):
    def f(kk, base):
        row = P2_TILES[kk // 2] * 32 + (kk & 1) * 16
        p.e(f"s_add_u32 s{sA}, s{sCB}, {row*896}")
        dma_pair(p, WB, VB0, VB1, base, f"B{kk}")
    return f


def w2_setup(p):
    srd(p, 16, 48, 1792 * 896)
    p.e(f"s_mul_i32 s{sC}, s{sW}, 448\ns_lshl_b32 s{sCB}, s{sI}, 7")
    w_lane(p, VB0, VB1, 896, sC, False)


def h_phase1(p, st, bars, covers, work_after, fill):
    p.e("s_barrier")
    st.issue(5)
    stamp(p, 1)
    p.wait_all(lg=True)
    p.e("s_barrier")
    st.xfree = True
    st.issue(fill)
    for k, (name, idx) in enumerate(bars):
        c = covers(name)
        if c is not None:
            assert st.next > c, (name, c, st.next)
            p.wait(vm=f"A{c}")
        p.e("s_barrier")
        if name == "bG":
            st.release(st.G - 1)
            return
        if name[0] == "b":
            st.release(int(name[1:]) - 2)
        work_after(name, bars[k + 1][1] - idx)


class Slicer:
    def __init__(self, p):
        self.p, self.q, self.rate, self.credit = p, [], 0.0, 0.0

    def load(self, items, span):
        assert not self.q, "previous slice not drained"
        self.q = list(items)
        self.rate = sum(c for _, c in items) / span
        self.credit = 0.0

    def run(self, dm):
        self.credit += self.rate * dm + 1e-6
        while self.q and self.q[0][1] <= self.credit:
            f, c = self.q.pop(0)
            self.credit -= c
            f()

    def drain(self):
        while self.q:
            self.q.pop(0)[0]()


def ho_read(p):
    for blk in range(8):
        p.lds(f"ds_read_b128 {vr(GIN + 4*blk, 4)}, v{VHO} offset:{ho_off(blk)}", f"hi{blk}")


def with_waits(p, ops, per):
    items = []
    for k, (txt, c, o) in enumerate(ops):
        def f(txt=txt, k=k):
            if k % per == 0:
                p.wait(lg=f"hi{k // per}")
            p.e(txt)
        items.append((f, c, o))
    return items


def phase2(p, st, hooks):
    L = OPT["p2la"]
    sH, sQ, sMM, sF, sG = sP, sP + 2, sP + 4, sP + 6, sP + 8
    for m in range(7):
        p.e(f"v_add_u32 v{VL+m}, {4096*m}, v1")
    p.e(f"""s_mul_i32 s{sH}, s{sT}, {2*56*2048}
s_mul_i32 s{sA}, s{sW}, {14*2048}
s_add_u32 s{sH}, s{sH}, s{sA}
s_add_u32 s{sH+1}, s{sH}, {56*2048}
s_lshl3_add_u32 s{sQ}, s{sT}, s{sW}
s_lshl_b32 s{sQ}, s{sQ}, 13
s_add_u32 s{sQ}, s{sQ}, {PQ_OFF:#x}
s_add_u32 s{sQ+1}, s{sQ}, {16*2048}
s_lshl3_add_u32 s{sMM}, s{sI}, s{sW}
s_lshl_b32 s{sMM}, s{sMM}, 13
s_add_u32 s{sMM}, s{sMM}, {M_OFF:#x}
s_add_u32 s{sMM+1}, s{sMM}, {16*2048}
s_lshr_b32 s{sA}, s{sT}, 1
s_lshl2_add_u32 s{sA}, s{sA}, s{sW}
s_lshl_b32 s{sA}, s{sA}, 10
s_and_b32 s{sB}, s{sT}, 1
s_lshl3_add_u32 s{sA}, s{sB}, s{sA}
s_add_u32 s{sF}, s{sA}, {FLAG_OFF:#x}
s_add_u32 s{sF+1}, s{sF}, {128*512}
s_lshl_b32 s{sA}, s{sW}, 14
s_lshr_b32 s{sB}, s{sI}, 1
s_lshl2_add_u32 s{sA}, s{sB}, s{sA}
s_add_u32 s{sG}, s{sA}, {FLAG_OFF + 131*512:#x}
v_and_b32 v2, 1, v0
v_lshlrev_b32 v2, 9, v2
v_and_b32 v3, 2, v0
v_lshl_add_u32 v2, v3, 1, v2
v_and_b32 v3, 3, v0
v_lshlrev_b32 v4, 6, v3
v_lshlrev_b32 v3, 12, v3
v_and_b32 v14, 4, v0
v_lshl_add_u32 v3, v14, 9, v3""")
    gc = Gate(14, 4, DBG, "0", 0, 64)
    gates = {0: [Gate(14, 2, WS, f"s{sF}", 0, 1)], 8: [Gate(14, 2, WS, f"s{sF}", 0, 2)], 16: [Gate(14, 2, WS, f"s{sF}", 0, 3)],
             24: [Gate(14, 2, WS, f"s{sF}", 16, 3)],
             28: [Gate(15, 2, WS, f"s{sF+1}", 0, 1), Gate(255, 3, WS, f"s{sG}", 384, 1)]}
    free = list(range(96, 248, 4))
    regs = {}

    def loads(kk):
        for g in gates.get(kk, []):
            g.check(p)
        if kk < 28:
            o = P2_TILES[kk // 2] * 2048 + (kk & 1) * 1024
            src = [sH, sH + 1]
        else:
            o = (kk - 28) * 1024
            src = [sQ, sQ + 1, sMM, sMM + 1]
        regs[kk] = []
        for s in src:
            r = free.pop(0)
            regs[kk].append(r)
            p.vmem(f"buffer_load_dwordx4 {vr(r,4)}, v{VL + (o >> 12)}, {WS}, s{s} offen offset:{o & 4095} sc1", f"h{kk}")
        for g in gates.get(kk + 4, []):
            g.issue(p)

    def wread(kk):
        p.wait(vm=f"B{kk}")
        base = slot(st.slot2[kk])
        for t in range(2):
            f = P2W + 8 * (kk & 1) + 4 * t
            a = VTR + 3 * t + (base >> 16)
            p.lds(f"ds_read_b64_tr_b16 {vr(f,2)}, v{a} offset:{base & 0xFFFF}", f"w{kk}")
            p.lds(f"ds_read_b64_tr_b16 {vr(f+2,2)}, v{a} offset:{(base & 0xFFFF) + 1024}", f"w{kk}")
    gc.issue(p)
    st.issue(4)
    gc.check(p)
    gates[0][0].issue(p)
    st.issue(4)
    stamp(p, 4)
    for kk in range(L):
        loads(kk)
    wread(0)
    stamp(p, 5)
    for kk in range(36):
        p.wait(vm=f"h{kk}", lg=f"w{kk}")
        if kk < 28:
            st.free.append(st.slot2[kk])
            A = [P2W + 8 * (kk & 1), P2W + 8 * (kk & 1) + 4]
        else:
            A = regs[kk][2:]
        B = regs[kk][:2]
        k = 0
        for nt in range(2):
            for tt in range(2):
                d = P2ACC + 32 * nt + 16 * tt
                p.e(mfma(d, A[nt], B[tt], "0" if kk == 0 else vr(d, 16)))
                if k == 0 and kk + 1 < 28:
                    wread(kk + 1)
                if k == 1 and kk + L < 36:
                    loads(kk + L)
                if k == 2:
                    st.issue(2)
                k += 1
        free += regs[kk]
        for h in hooks.get(kk, []):
            h()
        if kk == 27:
            stamp(p, 6)
    stamp(p, 7)
    p.e(f"""v_and_b32 v2, 31, v0
v_lshrrev_b32 v3, 5, v0
v_and_b32 v4, 15, v0
v_xor_b32 v3, v3, v4
v_lshlrev_b32 v3, 4, v3
v_and_b32 v4, 7, v0
v_lshl_add_u32 v3, v4, 8, v3
v_lshrrev_b32 v2, 3, v2
v_lshl_add_u32 v3, v2, 13, v3
s_add_u32 s{sA}, s{sM0W}, {slot(0)}
v_add_u32 v3, s{sA}, v3""")
    for nt in range(2):
        for q in range(4):
            p.e(f"v_xor_b32 v{4 + 4*nt + q}, {(8*nt + 2*q) << 4}, v3")
    for nt in range(2):
        for tt in range(2):
            for q in range(4):
                p.lds(f"ds_write_b128 v{4 + 4*nt + q}, {vr(P2ACC + 32*nt + 16*tt + 4*q, 4)} offset:{tt*32768}")
    p.wait_all(lg=True)
    stamp(p, 8)
    p.e("s_barrier")
    finish(p)


def prog_HF(p, bars):
    srd(p, 12, 44, 448 * 3584)
    w2_setup(p)
    p.e(f"s_lshl_b32 s{sC}, s{sW}, 4")
    w_lane(p, VW0, VW1, 3584, sC, False)
    p.e(f"""v_lshrrev_b32 v16, 2, v0
v_add_u32 v16, s{sC}, v16
v_mul_u32_u24 v16, 3584, v16
v_and_b32 v17, 3, v0
v_lshl_add_u32 v{VWH}, v17, 4, v16
s_mul_i32 s{sC}, s{sU}, 448
s_and_b32 s{sP}, s{sU}, 1
s_lshl_b32 s{sA}, s{sP}, 6
s_add_u32 s{sC}, s{sC}, s{sA}""")
    kl_table(p, 64 * 3584, sC)
    p.e(f"s_mul_i32 s{sCOL}, s{sP}, 448\ns_sub_u32 s{sCOL}, 384, s{sCOL}")
    skip = uid("nobias")
    p.e(f"""s_cmp_lg_u32 s{sW}, 1
s_cbranch_scc1 {skip}
s_lshl_b32 s{sA}, s{sP}, 3
v_add_u32 v16, s{sA}, v0
v_subrev_u32 v17, 56, v16
v_min_u32 v16, v16, v17
v_lshlrev_b32 v16, 3, v16
s_mul_i32 s{sA}, s{sU}, 448
buffer_load_dwordx2 v[18:19], v16, {BIAS}, s{sA} offen
s_mov_b32 s{sB}, {f32(GS):#x}
s_waitcnt vmcnt(0)
v_lshlrev_b32 v20, 16, v18
v_and_b32 v21, 0xffff0000, v18
v_lshlrev_b32 v22, 16, v19
v_and_b32 v23, 0xffff0000, v19
v_mul_f32 v20, s{sB}, v20
v_mul_f32 v21, s{sB}, v21
v_mul_f32 v22, s{sB}, v22
v_mul_f32 v23, s{sB}, v23
ds_write_b128 v1, v[20:23]
s_waitcnt lgkmcnt(0)""")
    p.label(skip)
    sHS = sP + 10
    p.e(f"""s_mov_b32 s{sK0}, {f32(-GA/GS):#x}
s_lshl2_add_u32 s{sHS}, s{sR}, s{sW}
s_mul_i32 s{sHS}, s{sHS}, 56
s_mul_i32 s{sB}, s{sU}, 7
s_add_u32 s{sHS}, s{sHS}, s{sB}
s_add_u32 s{sHS}, s{sHS}, s{sP}
s_lshl_b32 s{sHS}, s{sHS}, 11
s_add_u32 s{sHS+1}, s{sHS}, 4096
s_add_u32 s{sHS+2}, s{sHS}, 8192""")

    def issue1(g, base):
        if g < 21:
            p.e(f"s_add_u32 s{sA}, s{sKL + g % 7}, {128 * (g // 7)}")
            dma_pair(p, WA, VW0, VW1, base, f"A{g}")
        else:
            for i in range(2):
                s = 2 * (g - 21) + i
                if s < 7:
                    p.e(f"s_add_u32 s{sA}, s{sKL + s}, s{sCOL}\ns_add_u32 m0, s{sM0W}, {base + 1024*i}")
                    p.vmem(f"buffer_load_dwordx4 v{VWH}, {WA}, s{sA} offen lds", f"A{g}")
    st = Stream(p, 25, issue1, 28, w2_issue(p))
    sl = Slicer(p)
    idx = dict(bars)

    def gelu_items(ps):
        items = []
        for f, c, o in with_waits(p, gelu_ops(GIN, 32, GT, GOUT), 26):
            items.append((f, c))
            if o is not None and o % 4 == 3:
                items.append((lambda o=o: p.vmem(
                    f"buffer_store_dwordx4 {vr(GOUT + o - 3, 4)}, v1, {WS}, s{sHS+ps} offen offset:{(o//4)*1024} sc1", f"hs{ps}"), 8))
        return items

    def flag(ps):
        p.wait(vm=f"hs{ps}")
        flag_store(p, 15, ps + 1, 0)

    def covers(name):
        if name == "ho2":
            return 24
        return int(name[1:]) if name[0] == "b" and name != "bG" else None

    def work(name, dm):
        if name.startswith("ho"):
            ps = int(name[2:])
            sl.drain()
            ho_read(p)
            span = idx[f"ho{ps+1}"] - idx[name] if ps < 2 else 2 * (idx["bG"] - idx[name])
            sl.load(gelu_items(ps), span)
            if ps == 0:
                stamp(p, 2)
        else:
            st.issue(2)
        if name == "b19":
            flag(0)
        sl.run(dm)
    h_phase1(p, st, bars, covers, work, 4)
    flag(1)
    p.wait(lg="hi7")
    st.free = [15, 16, 17, 18] + st.free
    st.issue(2)
    sl.drain()
    stamp(p, 3)
    phase2(p, st, {0: [lambda: flag(2)]})


def prog_HA(p, bars, maker):
    srd(p, 12, 38, 448 * 2688)
    sHD = sP + 12
    if maker:
        srd(p, 16, 40, 448 * 896)
        p.e(f"""s_lshr_b32 s{sHD}, s{sT}, 1
s_mul_i32 s{sC}, s{sHD}, 28
s_lshl_b32 s{sCB}, s{sW}, 8""")
        w_lane(p, VB0, VB1, 896, sC, False)

        def issue2(kk, base):
            p.e(f"s_add_u32 s{sA}, s{sCB}, {(kk >> 1)*128 + (kk & 1)*16*896}")
            dma_pair(p, WB, VB0, VB1, base, f"B{kk}")
        nB = 4
    else:
        w2_setup(p)
        issue2, nB = w2_issue(p), 28
    p.e(f"s_lshl_b32 s{sC}, s{sW}, 4")
    w_lane(p, VW0, VW1, 2688, sC, True)
    p.e(f"s_mul_i32 s{sC}, s{sU}, 112")
    kl_table(p, 64 * 2688, sC)
    phi_consts(p, GT)
    PK, VV, DD, ONES = 96, 128, 16, 32
    sZ, sKV = sP + 10, sP + 11
    VRD, VKO = VWH, 15
    p.e(f"""s_and_b32 s{sA}, s{sW}, 1
s_lshl1_add_u32 s{sB}, s{sU}, s{sA}
s_lshl_b32 s{sA}, s{sA}, 13
s_add_u32 s{sA}, s{sA}, {HO}
v_add_u32 v{VRD}, s{sA}, v1
s_lshl4_add_u32 s{sZ}, s{sB}, s{sR}
s_lshl_b32 s{sZ}, s{sZ}, 6
s_add_u32 s{sZ}, s{sZ}, {Z_OFF:#x}
s_lshl_b32 s{sKV}, s{sB}, 5
s_add_u32 s{sKV}, s{sKV}, s{sR}
s_lshl_b32 s{sKV}, s{sKV}, 11
s_add_u32 s{sKV}, s{sKV}, {KV_OFF:#x}
v_lshrrev_b32 v16, 5, v0
v_lshlrev_b32 v14, 4, v16
v_and_b32 v17, 15, v0
v_add_u32 v17, v17, v14
v_lshlrev_b32 v17, 4, v17
v_bfe_u32 v16, v0, 4, 1
v_lshl_add_u32 v{VKO}, v16, 15, v17
v_lshl_add_u32 v255, v16, 11, v17""")
    for k in range(4):
        p.e(f"v_mov_b32 v{ONES+k}, 0x3f803f80")

    def issue1(g, base):
        p.e(f"s_add_u32 s{sA}, s{sKL + g % 7}, {(896, 1792, 0)[g // 7]}")
        dma_pair(p, WA, VW0, VW1, base, f"A{g}")
    st = Stream(p, 21, issue1, nB, issue2)
    sl = Slicer(p)
    idx = dict(bars)

    def k_items():
        items = []
        ops = with_waits(p, phi_ops(GIN, 32, GT), 16)
        for b in range(4):
            items += [(f, c) for f, c, _ in ops[32 * b:32 * b + 32]]
            for k in range(4):
                items.append((lambda b=b, k=k: p.e(f"v_cvt_pk_bf16_f32 v{GOUT+4*b+k}, v{GIN+8*b+2*k}, v{GIN+8*b+2*k+1}"), 4))
        for b in range(4):
            items.append((lambda b=b: p.lds(f"ds_write_b128 v{VHO}, {vr(GOUT+4*b,4)} offset:{ho_off(b)}", "pk"), 4))
        items.append((lambda: p.wait_all(lg=True), 4))
        return items

    def covers(name):
        if name == "hoV":
            return 20
        return int(name[1:]) if name[0] == "b" and name != "bG" else None

    def chain(a_of, b_of):
        for j in range(8):
            p.e(mfma(DD, a_of(j), b_of(j), "0" if j == 0 else vr(DD, 16)))

    def work(name, dm):
        if name == "hoK":
            ho_read(p)
            sl.load(k_items(), idx["b13"] - idx["hoK"])
            stamp(p, 2)
        elif name == "b13":
            assert not sl.q
            for j in range(8):
                p.lds(f"ds_read_b128 {vr(PK+4*j,4)}, v{VRD} offset:{j*1024}", "pkr")
            st.issue(2)
            p.wait_all(lg=True)
            skip = uid("noz")
            p.e(f"s_cmp_lt_u32 s{sW}, 2\ns_cbranch_scc1 {skip}")
            chain(lambda j: PK + 4 * j, lambda j: ONES)
            for k in range(8):
                p.e(f"v_cvt_pk_bf16_f32 v{GOUT+k}, v{DD+2*k}, v{DD+2*k+1}")
            p.e("s_mov_b32 exec_lo, 1\ns_mov_b32 exec_hi, 1")
            for ks in range(2):
                p.vmem(f"buffer_store_dwordx4 {vr(GOUT+4*ks,4)}, v14, {WS}, s{sZ} offen offset:{32*ks} sc1", "zs", ghost=True)
            p.e("s_mov_b64 exec, -1")
            p.label(skip)
        elif name == "hoV":
            zpath, done = uid("zf"), uid("kvdone")
            p.e(f"s_cmp_ge_u32 s{sW}, 2\ns_cbranch_scc1 {zpath}")
            for j in range(8):
                p.lds(f"ds_read_b128 {vr(VV+4*j,4)}, v{VRD} offset:{16384 + j*1024}", f"vr{j}")
            p.e("s_setprio 2")
            for j in range(8):
                p.wait(lg=f"vr{j}")
                p.e(mfma(DD, VV + 4 * j, PK + 4 * j, "0" if j == 0 else vr(DD, 16)))
            for q in range(4):
                p.vmem(f"buffer_store_dwordx4 {vr(DD+4*q,4)}, v{VKO}, {WS}, s{sKV} offen offset:{512*q} sc1", "kvs", ghost=True)
            p.e("s_setprio 0")
            p.wait(vm="kvs", keep=True)
            flag_store(p, GT + 6, 1, 256, ghost=True)
            p.e(f"s_branch {done}")
            p.label(zpath)
            p.wait(vm="zs", keep=True)
            flag_store(p, GT + 6, 1, 128, ghost=True)
            p.label(done)
            stamp(p, 3)
        else:
            st.issue(2)
        sl.run(dm)
    h_phase1(p, st, bars, covers, work, 4)
    if not maker:
        st.free = [15, 16, 17, 18] + st.free
        phase2(p, st, {})
        return
    WO, KI, RI, KB = 32, 96, 128, 64
    p.wait(vm="B3")
    for kk in range(4):
        base = slot(st.slot2[kk])
        for t in range(2):
            f = WO + 8 * kk + 4 * t
            a = VTR + 3 * t + (base >> 16)
            p.lds(f"ds_read_b64_tr_b16 {vr(f,2)}, v{a} offset:{base & 0xFFFF}")
            p.lds(f"ds_read_b64_tr_b16 {vr(f+2,2)}, v{a} offset:{(base & 0xFFFF) + 1024}")
    p.e(f"""v_and_b32 v2, 3, v0
v_lshlrev_b32 v4, 6, v2
v_lshlrev_b32 v2, 12, v2
s_lshr_b32 s{sA}, s{sHD}, 1
s_lshl_b32 s{sB}, s{sW}, 5
s_add_u32 s{sA}, s{sA}, s{sB}
s_lshl_b32 s{sA}, s{sA}, 9
s_and_b32 s{sB}, s{sHD}, 1
s_lshl2_add_u32 s{sA}, s{sB}, s{sA}
s_add_u32 s{sP}, s{sA}, {FLAG_OFF + 128*512:#x}
s_lshl2_add_u32 s{sA}, s{sT}, s{sW}
s_lshl_b32 s{sA}, s{sA}, 13
s_add_u32 s{sP+1}, s{sA}, {KV_OFF:#x}
s_add_u32 s{sP+2}, s{sP+1}, 4096
s_lshl_b32 s{sA}, s{sW}, 7
s_add_u32 s{sA}, s{sA}, s{sT}
s_lshl_b32 s{sA}, s{sA}, 10
s_add_u32 s{sP+3}, s{sA}, {M_OFF:#x}
v_add_u32 v5, {slot(10)}, v1
v_add_u32 v6, s{sM0W}, v5
v_mov_b32 v7, {CNT_OFF}
v_mov_b32 v3, 1""")
    gc = Gate(14, 4, DBG, "0", 0, 64)
    gk = Gate(14, 2, WS, f"s{sP}", 256, 1)
    gc.issue(p)
    gc.check(p)
    gk.issue(p)
    gk.check(p)
    stamp(p, 4)
    for pr in range(2):
        for q in range(4):
            p.vmem(f"buffer_load_dwordx4 {vr(KI + 16*pr + 4*q, 4)}, v255, {WS}, s{sP+1+pr} offen offset:{512*q} sc1", f"ki{pr}{q}")
    for q in range(4):
        p.wait(vm=f"ki1{q}")
        for k in range(0, 4, 2):
            p.e(f"v_pk_add_f32 {vr(KI+4*q+k,2)}, {vr(KI+4*q+k,2)}, {vr(KI+16+4*q+k,2)}")
        p.lds(f"ds_write_b128 v6, {vr(KI+4*q,4)} offset:{ho_off(q)}")
    p.wait_all(lg=True)
    again, ok = uid("lagain"), uid("lok")
    p.e("s_mov_b64 exec, 1\nds_add_u32 v7, v3\ns_mov_b64 exec, -1")
    p.label(again)
    p.e(f"""ds_read_b32 v14, v7
s_waitcnt lgkmcnt(0)
v_cmp_le_u32 vcc, 4, v14
s_cmp_eq_u64 vcc, exec
s_cbranch_scc1 {ok}
s_cmp_eq_u32 s{sSPIN}, 0
s_cbranch_scc1 {ok}
s_sub_u32 s{sSPIN}, s{sSPIN}, 1
s_branch {again}""")
    p.label(ok)
    stamp(p, 5)
    for q in range(4):
        for wp in range(4):
            p.lds(f"ds_read_b128 {vr(RI + 16*q + 4*wp, 4)}, v5 offset:{ho_off(q) + wp*2048}", f"ri{q}")
    for q in range(4):
        b = RI + 16 * q
        p.wait(lg=f"ri{q}")
        for (x, y) in ((0, 4), (8, 12), (0, 8)):
            for k in range(0, 4, 2):
                p.e(f"v_pk_add_f32 {vr(b+x+k,2)}, {vr(b+x+k,2)}, {vr(b+y+k,2)}")
        for k in range(2):
            p.e(f"v_cvt_pk_bf16_f32 v{KB+2*q+k}, v{b+2*k}, v{b+2*k+1}")
    p.e(f"s_mov_b32 exec_lo, 0\nv_mov_b32 v{KB+6}, 0\nv_mov_b32 v{KB+7}, 0\ns_mov_b32 exec_lo, -1\ns_nop 3")
    MD = 128
    for ks in range(2):
        for cb in range(2):
            for t in range(2):
                d = MD + 32 * cb + 16 * t
                p.e(mfma(d, KB + 4 * ks, WO + 8 * (2 * cb + ks) + 4 * t, "0" if ks == 0 else vr(d, 16)))
    last = uid("mlast")
    for cb in range(2):
        if cb == 1:
            p.e(f"s_cmp_eq_u32 s{sW}, 3\ns_cbranch_scc1 {last}")
        for t in range(2):
            d = MD + 32 * cb + 16 * t
            for k in range(8):
                p.e(f"v_add_f32 v{d+k}, v{d+k}, v{d+8+k}")
            for k in range(4):
                p.e(f"v_cvt_pk_bf16_f32 v{d+8+k}, v{d+2*k}, v{d+2*k+1}")
            p.e(f"s_add_u32 s{sA}, s{sP+3}, {(2*cb + t)*32768}")
            p.vmem(f"buffer_store_dwordx4 {vr(d+8,4)}, v1, {WS}, s{sA} offen sc1", "ms")
    p.label(last)
    stamp(p, 6)
    p.wait_all(vm=True)
    flag_store(p, 14, 1, 384)
    finish(p)


def build():
    top = Prog()
    prologue(top)
    m_common(top)
    top.e(f"s_cmp_ge_u32 s{sI}, 4\ns_cbranch_scc1 L_MA")
    mf, ma = Prog(), Prog()
    barsF = prog_MF(mf)
    ma.label("L_MA")
    barsA = prog_MA(ma)
    h = Prog()
    h.label("L_H")
    h_common(h)
    h.e(f"s_cmp_eq_u32 s{sI}, 7\ns_cbranch_scc1 L_HM\ns_cmp_ge_u32 s{sI}, 4\ns_cbranch_scc1 L_HA")
    hf, ha, hm = Prog(), Prog(), Prog()
    prog_HF(hf, barsF)
    ha.label("L_HA")
    prog_HA(ha, barsA, False)
    hm.label("L_HM")
    prog_HA(hm, barsA, True)
    lines = top.lines + mf.lines + ma.lines + h.lines + hf.lines + ha.lines + hm.lines + ["L_end:", "s_endpgm"]
    lines, npad = pad(lines)
    head = open(f"cdna_kernels/{NAME}.s.ref").read().split("; Override launch")[0]
    txt = head + "; @launch grid=(256,1,1) block=(512,1,1) lds=163840\n"
    txt += f""".amdgcn_target "amdgcn-amd-amdhsa--gfx950"
.text
.globl {NAME}_kernel
.p2align 8
.type {NAME}_kernel,@function
{NAME}_kernel:
"""
    txt += "\n".join(l if l.endswith(":") else "    " + l for l in lines) + "\n"
    txt += f""".section .rodata,"a"
.p2align 6
.amdhsa_kernel {NAME}_kernel
  .amdhsa_next_free_vgpr 256
  .amdhsa_next_free_sgpr 102
  .amdhsa_accum_offset 256
  .amdhsa_group_segment_fixed_size 0
  .amdhsa_kernarg_size 88
  .amdhsa_user_sgpr_count 2
  .amdhsa_user_sgpr_kernarg_segment_ptr 1
  .amdhsa_system_sgpr_workgroup_id_x 1
.end_amdhsa_kernel
"""
    return txt, npad, (barsF, barsA)


if __name__ == "__main__":
    out = sys.argv[1]
    for a in sys.argv[2:]:
        k, v = a.split("=")
        assert k in OPT, k
        OPT[k] = int(v)
    txt, npad, bars = build()
    open(out, "w").write(txt)
    print(f"wrote {out}: {txt.count(chr(10))} lines, {npad} pads")
```

```python
import math
import sys
from asmlib import Prog, f32, vr, sr, pad

NAME = "parallel_sum__linear_attn_block__dense_activation_gelu__prompt"
OPT = dict(diag_enc=-1, diag_wg=9, diag_wave=0, diag_hold=0, bar0=9, no_gelu=0, no_hst=0, no_ho=0, fill=2, stamps=0, la=5, p2la=6, exact_r=0, rot=1, codepf=1)

H_OFF, PQ_OFF, M_OFF, KV_OFF, Z_OFF, FLAG_OFF, STAMP_OFF, WS_SZ = (
    0x0, 0x700000, 0x900000, 0x980000, 0xA80000, 0xA90000, 0xB00000, 0xC00000)
NRING = 15
def slot(i): return 8192 + 8192 * i
XBASE = slot(5)
HO = slot(15)
CNT_OFF = 1024
GA = 2.0 * math.sqrt(2.0 / math.pi) * math.log2(math.e)
GS = (GA * 0.044715) ** (1.0 / 3.0)
LOG2E = math.log2(math.e)
sWAVE, sW, sR, sU, sI = 3, 4, 5, 6, 7
X, WA, WB, WS, OUT, DBG, BIAS = (sr(a, 4) for a in (8, 12, 16, 20, 24, 28, 32))
sKL, sRHO, sT, sA, sB, sC, sFLAG, sSPIN = 58, 65, 66, 67, 68, 69, 70, 71
sK0, sK1, sK2 = 72, 73, 74
sM0W = 75
sP = 36
_uid = [0]


def uid(s):
    _uid[0] += 1
    return f"L{s}{_uid[0]}"


def srd(p, a, ptr, size):
    p.e(f"s_mov_b32 s{a}, s{ptr}\ns_mov_b32 s{a+1}, s{ptr+1}\ns_mov_b32 s{a+2}, {size:#x}\ns_mov_b32 s{a+3}, 0x20000")


def stamp(p, k, kind=1):
    if OPT["stamps"] and (OPT["stamps"] == kind or k in (0, 9)):
        p.e(f"s_memtime s[{80+2*k}:{81+2*k}]")


def barrier(p, name):
    k = None
    if name[0] == "b" and name[1:].isdigit() and 0 <= int(name[1:]) - OPT["bar0"] < 4:
        k = 1 + 2 * (int(name[1:]) - OPT["bar0"])
        stamp(p, k, 2)
    p.e("s_barrier")
    if k:
        stamp(p, k + 1, 2)


def finish(p):
    if OPT["diag_enc"] >= 0:
        k, l, skip = OPT["diag_enc"], uid("hold"), uid("nohold")
        stamp(p, 9)
        p.e(f"s_waitcnt lgkmcnt(0)\ns_lshl3_add_u32 s{sA}, s2, s{sWAVE}\ns_cmp_lg_u32 s{sA}, {OPT['diag_wg']*8 + OPT['diag_wave']}\ns_cbranch_scc1 {skip}")
        if k < 10:
            p.e(f"s_sub_u32 s{sA}, s{80+2*k}, s80\ns_lshr_b32 s{sA}, s{sA}, 2\ns_min_u32 s{sA}, s{sA}, 50000\ns_add_u32 s{sA}, s{sA}, 4000")
            p.label(l)
            p.e(f"s_memrealtime s[98:99]\ns_waitcnt lgkmcnt(0)\ns_sub_u32 s98, s98, s100\ns_cmp_lt_u32 s98, s{sA}\ns_cbranch_scc1 {l}")
        else:
            p.label(l)
            p.e(f"s_memtime s[98:99]\ns_waitcnt lgkmcnt(0)\ns_sub_u32 s98, s98, s80\ns_cmp_lt_u32 s98, 96000\ns_cbranch_scc1 {l}")
        p.label(skip)
        p.e("s_endpgm")
        return
    if OPT["diag_hold"]:
        l = uid("hold")
        p.label(l)
        p.e(f"s_memrealtime s[98:99]\ns_waitcnt lgkmcnt(0)\ns_sub_u32 s98, s98, s100\ns_cmp_lt_u32 s98, {OPT['diag_hold']}\ns_cbranch_scc1 {l}")
    if OPT["stamps"]:
        stamp(p, 9)
        p.e("s_waitcnt lgkmcnt(0)")
        p.e(f"s_lshl_b32 s{sA}, s2, 3\ns_add_u32 s{sA}, s{sA}, s{sWAVE}\ns_lshl_b32 s{sA}, s{sA}, 6\ns_add_u32 s{sA}, s{sA}, {STAMP_OFF:#x}")
        p.e("s_mov_b64 exec, 1")
        for k in range(11):
            p.e(f"v_mov_b32 v2, s{80+2*k}\nbuffer_store_dword v2, off, {WS}, s{sA} offset:{4*k}\ns_nop 1")
    p.e("s_endpgm")


def kl_table(p, mul, base=None):
    for g in range(7):
        p.e(f"s_add_u32 s{sA}, s{sRHO}, {g}\ns_cmp_ge_u32 s{sA}, 7\ns_cselect_b32 s{sB}, 7, 0\ns_sub_u32 s{sA}, s{sA}, s{sB}")
        p.e(f"s_mul_i32 s{sKL+g}, s{sA}, {mul}")
        if base is not None:
            p.e(f"s_add_u32 s{sKL+g}, s{sKL+g}, s{base}")


def flag_store(p, vtmp, val, imm, ghost=False):
    p.e(f"v_mov_b32 v{vtmp}, {val}\ns_mov_b64 exec, 1")
    p.vmem(f"buffer_store_dword v{vtmp}, off, {WS}, s{sFLAG} offset:{imm} sc1", "flag", ghost)
    p.e("s_mov_b64 exec, -1")


class Gate:
    def __init__(self, vd, va, rs, soff, imm, want):
        self.vd, self.want = vd, want
        self.ld = f"buffer_load_dword v{vd}, v{va}, {rs}, {soff} offen offset:{imm} sc1"
        self.tag = uid("gate")

    def issue(self, p):
        p.vmem(self.ld, self.tag)

    def check(self, p):
        p.wait(vm=self.tag)
        again, ok = uid("again"), uid("ok")
        p.label(again)
        p.e(f"v_cmp_le_u32 vcc, {self.want}, v{self.vd}\ns_cmp_eq_u64 vcc, exec\ns_cbranch_scc1 {ok}")
        p.e(f"s_cmp_eq_u32 s{sSPIN}, 0\ns_cbranch_scc1 {ok}\ns_sub_u32 s{sSPIN}, s{sSPIN}, 1")
        p.e(f"{self.ld}\ns_waitcnt vmcnt(0)\ns_branch {again}")
        p.label(ok)


def gelu_ops(vin, n, vt, vout):
    ops = []
    for g in range(0, n, 4):
        w = [vin + g + k for k in range(4)]
        t = [vt + k for k in range(4)]
        ops += [(f"v_fma_f32 v{t[k]}, -v{w[k]}, v{w[k]}, s{sK0}", 4, None) for k in range(4)]
        ops += [(f"v_mul_f32 v{t[k]}, v{w[k]}, v{t[k]}", 4, None) for k in range(4)]
        ops += [(f"v_exp_f32 v{t[k]}, v{t[k]}", 8, None) for k in range(4)]
        ops += [(f"v_add_f32 v{t[k]}, 1.0, v{t[k]}", 4, None) for k in range(4)]
        ops += [(f"v_rcp_f32 v{t[k]}, v{t[k]}", 8, None) for k in range(4)]
        ops += [(f"v_mul_f32 v{t[k]}, v{w[k]}, v{t[k]}", 4, None) for k in range(4)]
        ops += [(f"v_cvt_pk_bf16_f32 v{vout + g//2 + k}, v{t[2*k]}, v{t[2*k+1]}", 4, g // 2 + k) for k in range(2)]
    return ops


def phi_ops(vin, n, vt):
    ops = []
    for g in range(0, n, 4):
        w = [vin + g + k for k in range(4)]
        t = [vt + k for k in range(4)]
        ops += [(f"v_fma_f32 v{t[k]}, v{w[k]}, s{sK0}, v{vt+4}", 4, None) for k in range(4)]
        ops += [(f"v_exp_f32 v{t[k]}, v{t[k]} clamp", 8, None) for k in range(4)]
        ops += [(f"v_max_f32 v{w[k]}, s{sK1}, v{w[k]}", 4, None) for k in range(4)]
        ops += [(f"v_add_f32 v{w[k]}, v{w[k]}, v{t[k]}", 4, None) for k in range(4)]
    return ops


def phi_consts(p, vt):
    p.e(f"s_mov_b32 s{sK0}, {f32(LOG2E):#x}\ns_mov_b32 s{sK1}, {f32(1e-6):#x}\nv_mov_b32 v{vt+4}, {f32(-1e-6*LOG2E):#x}")


def mfma(d, a, b, c):
    return f"v_mfma_f32_32x32x16_bf16 {vr(d,16)}, {vr(a,4)}, {vr(b,4)}, {c}"


def tr_lane_addr(p, vd, vt, rowmul, colbyte, swz):
    p.e(f"""v_lshrrev_b32 v{vt}, 5, v0
v_mul_u32_u24 v{vt}, {rowmul}, v{vt}
v_bfe_u32 v{vt+1}, v0, 2, 2
v_add_u32 v{vt}, v{vt}, v{vt+1}
v_lshlrev_b32 v{vt}, {7 if swz else 6}, v{vt}
v_bfe_u32 v{vt+1}, v0, 4, 1
v_lshlrev_b32 v{vt+1}, 5, v{vt+1}
v_and_b32 v{vd}, 3, v0
v_lshl_add_u32 v{vd}, v{vd}, 3, v{vt+1}""")
    if colbyte:
        p.e(f"v_add_u32 v{vd}, {colbyte}, v{vd}")
    if swz:
        p.e(f"v_bfe_u32 v{vt+1}, v0, 3, 1\nv_lshlrev_b32 v{vt+1}, 6, v{vt+1}\nv_xor_b32 v{vd}, v{vd}, v{vt+1}")
    p.e(f"v_add_u32 v{vd}, v{vd}, v{vt}")


def prologue(p):
    p.e(f"""s_cmp_ge_u32 s2, 256
s_cbranch_scc1 L_end
s_load_dwordx16 s[36:51], s[0:1], 0
s_load_dwordx4 s[52:55], s[0:1], 64
s_load_dwordx2 s[56:57], s[0:1], 80""")
    if OPT["stamps"] or OPT["diag_hold"]:
        p.e("s_memrealtime s[100:101]")
    stamp(p, 0)
    p.e(f"""v_lshrrev_b32 v1, 6, v0
v_and_b32 v0, 63, v0
v_readfirstlane_b32 s{sWAVE}, v1
v_lshlrev_b32 v1, 4, v0
s_bfe_u32 s{sA}, s2, 0x20001
s_and_b32 s{sB}, s2, 1
s_bfe_u32 s{sC}, s2, 0x20003
s_lshr_b32 s{sI}, s2, 5
s_lshl2_add_u32 s{sR}, s{sA}, s{sC}
s_and_b32 s{sU}, s{sI}, 3
s_lshl2_add_u32 s{sU}, s{sB}, s{sU}
s_and_b32 s{sT}, s2, 7
s_lshl2_add_u32 s{sT}, s{sT}, s{sC}
s_and_b32 s{sW}, s{sWAVE}, 3
s_lshl_b32 s{sM0W}, s{sW}, 11""")
    if OPT["rot"]:
        p.e(f"""s_lshl1_add_u32 s{sRHO}, s{sC}, s{sI}
s_lshl2_add_u32 s{sRHO}, s{sB}, s{sRHO}
s_add_u32 s{sRHO}, s{sRHO}, s{sA}
s_mul_i32 s{sA}, s{sRHO}, 37
s_lshr_b32 s{sA}, s{sA}, 8
s_mul_i32 s{sA}, s{sA}, 7
s_sub_u32 s{sRHO}, s{sRHO}, s{sA}""")
    else:
        p.e(f"s_mov_b32 s{sRHO}, 0")
    p.e(f"""s_lshr_b32 s{sA}, s{sI}, 2
s_lshl4_add_u32 s{sA}, s{sA}, s{sR}
s_lshl3_add_u32 s{sA}, s{sA}, s{sU}
s_lshl_b32 s{sA}, s{sA}, 9
s_lshl2_add_u32 s{sA}, s{sW}, s{sA}
s_add_u32 s{sFLAG}, s{sA}, {FLAG_OFF:#x}
s_mov_b32 s{sSPIN}, 0x40000
s_cmp_ge_u32 s{sWAVE}, 4
s_cbranch_scc1 L_H""")


XN, ACC, FR, MT = 16, (128, 160), 192, 216
NFR = 6


def m_common(p):
    p.e(f"""v_lshrrev_b32 v10, 3, v0
v_lshrrev_b32 v11, 4, v0
v_and_b32 v12, 7, v0
v_xor_b32 v12, v12, v11
v_mul_u32_u24 v10, 896, v10
v_lshl_add_u32 v2, v12, 4, v10
v_xor_b32 v3, 64, v2
v_add_u32 v3, {8*896-1024}, v3
v_add_u32 v4, {2*(8*896-1024)}, v2
v_add_u32 v5, {2*(8*896-1024)}, v3
s_lshl2_add_u32 s{sC}, s{sR}, s{sW}
s_mul_i32 s{sC}, s{sC}, {32*896}""")
    kl_table(p, 128, sC)
    p.e(f"s_mul_i32 s{sC}, s{sW}, 28672\ns_add_u32 s{sC}, s{sC}, {XBASE}")
    p.e("s_waitcnt lgkmcnt(0)")
    srd(p, 8, 36, 2048 * 896)

    def xdma(g):
        p.e(f"s_add_u32 m0, s{sC}, {g*4096}")
        for b in range(4):
            p.vmem(f"buffer_load_dwordx4 v{2+b}, {X}, s{sKL+g} offen offset:{b*1024} lds", f"x{g}")
    for g in range(3):
        xdma(g)
    stamp(p, 1)
    srd(p, 20, 56, WS_SZ)
    srd(p, 24, 52, 2048 * 896)
    srd(p, 28, 54, 256)
    srd(p, 32, 50, 896)
    p.e(f"""v_and_b32 v10, 31, v0
v_lshlrev_b32 v11, 7, v10
v_bfe_u32 v12, v10, 1, 3
v_lshrrev_b32 v13, 5, v0
v_xor_b32 v12, v12, v13
v_lshl_add_u32 v6, v12, 4, v11
v_add_u32 v6, s{sC}, v6
v_xor_b32 v7, 32, v6
v_xor_b32 v8, 64, v6
v_xor_b32 v9, 0x60, v6
s_mov_b32 s{sK0}, 0x3f803f80""")
    for k in range(4):
        p.e(f"v_mov_b32 v{MT+k}, 0")

    def stats(g):
        for d in range(16):
            x = XN + 16 * g + d
            if d % 4 == 0:
                p.wait(lg=f"xf{g}_{d//4}")
            p.e(f"v_dot2c_f32_bf16 v{MT + (d&1)}, s{sK0}, v{x}\nv_dot2c_f32_bf16 v{MT + 2 + (d&1)}, v{x}, v{x}")
    for g in range(7):
        p.wait(vm=f"x{g}")
        for j in range(4):
            p.lds(f"ds_read_b128 {vr(XN + 16*g + 4*j, 4)}, v{6+j} offset:{g*4096}", f"xf{g}_{j}")
        if g + 3 < 7:
            xdma(g + 3)
        if g == 3:
            p.e("s_barrier")
        if g == 6:
            p.wait_all(lg=True)
            p.e("s_barrier")
            stamp(p, 2)
        stats(g)
    a, b, c, d = MT, MT + 1, MT + 2, MT + 3
    RLO, RHI, CC = MT + 4, MT + 5, MT + 6
    p.e(f"""s_cmp_ge_u32 s{sI}, 4
s_cselect_b32 s{sK1}, 1.0, {f32(GS):#x}
v_add_f32 v{a}, v{a}, v{b}
v_add_f32 v{c}, v{c}, v{d}
v_mov_b32 v{b}, v{a}
v_mov_b32 v{d}, v{c}
v_permlane32_swap_b32 v{a}, v{b}
v_permlane32_swap_b32 v{c}, v{d}
v_add_f32 v{a}, v{a}, v{b}
v_add_f32 v{c}, v{c}, v{d}
v_mul_f32 v{a}, {f32(1/448):#x}, v{a}
v_mul_f32 v{c}, {f32(1/448):#x}, v{c}
v_fma_f32 v{c}, -v{a}, v{a}, v{c}
v_max_f32 v{c}, 0, v{c}
v_cvt_pk_bf16_f32 v{b}, v{a}, v{c}
v_lshlrev_b32 v{a}, 16, v{b}
v_and_b32 v{c}, 0xffff0000, v{b}
v_add_f32 v{c}, {f32(1e-5):#x}, v{c}
v_cvt_pk_bf16_f32 v{c}, v{c}, v{c}
v_lshlrev_b32 v{c}, 16, v{c}
v_sqrt_f32 v{c}, v{c}
v_cvt_pk_bf16_f32 v{c}, v{c}, v{c}
v_lshlrev_b32 v{c}, 16, v{c}
v_rcp_f32 v{c}, v{c}
v_mul_f32 v{c}, s{sK1}, v{c}""")
    T0 = MT + 8
    if OPT["exact_r"]:
        p.e(f"v_mov_b32 v{RLO}, v{c}\nv_mul_f32 v{CC}, -v{a}, v{c}")
        for i in range(112):
            x, t = XN + i, T0 + 2 * (i % 4)
            p.e(f"v_lshlrev_b32 v{t}, 16, v{x}\nv_and_b32 v{t+1}, 0xffff0000, v{x}")
            p.e(f"v_pk_fma_f32 {vr(t,2)}, {vr(t,2)}, {vr(RLO,2)}, {vr(CC,2)} op_sel_hi:[1,0,0]")
            p.e(f"v_cvt_pk_bf16_f32 v{x}, v{t}, v{t+1}")
    else:
        p.e(f"""v_cvt_pk_bf16_f32 v{RLO}, v{c}, v{c}
v_and_b32 v{RHI}, 0xffff0000, v{RLO}
v_lshrrev_b32 v{RLO}, 16, v{RLO}
v_mul_f32 v{CC}, -v{a}, v{RHI}""")
        for i in range(112 + 2):
            if i < 112:
                x, t = XN + i, T0 + 2 * (i % 4)
                p.e(f"v_dot2_f32_bf16 v{t}, v{x}, v{RLO}, v{CC}\nv_dot2_f32_bf16 v{t+1}, v{x}, v{RHI}, v{CC}")
            if i >= 2:
                t = T0 + 2 * ((i - 2) % 4)
                p.e(f"v_cvt_pk_bf16_f32 v{XN+i-2}, v{t}, v{t+1}")
    stamp(p, 3)


def m_loop(p, ops, bar_stage, hooks, bars):
    LA = OPT["la"]
    n = len(ops)

    def rd(i):
        o = ops[i]
        if (i == 0 or ops[i - 1]["stage"] != o["stage"]) and o["stage"] in bar_stage:
            barrier(p, f"b{o['stage']}")
            bars.append((f"b{o['stage']}", max(i - LA, 0)))
        f = FR + 4 * (i % NFR)
        a = o["areg"] + (o["off"] >> 16)
        off = o["off"] & 0xFFFF
        p.lds(f"ds_read_b64_tr_b16 {vr(f,2)}, v{a} offset:{off}", f"f{i}")
        p.lds(f"ds_read_b64_tr_b16 {vr(f+2,2)}, v{a} offset:{off + o['step']}", f"f{i}")
    for i in range(LA):
        rd(i)
    for i in range(n):
        o = ops[i]
        p.wait(lg=[f"f{i}", o.get("need")])
        f = FR + 4 * (i % NFR)
        a, b = (o["xn"], f) if o["swap"] else (f, o["xn"])
        p.e(mfma(o["acc"], a, b, o["c"]))
        if i + LA < n:
            rd(i + LA)
        for h in hooks.get(i, []):
            h()


def full_pass_ops(ps, accset, c0, swap, need=None):
    ops = []
    for s in range(7):
        g = 7 * ps + s
        for ks in range(4):
            for t in range(2):
                acc = ACC[accset] + 16 * t
                first = s == 0 and ks == 0
                ops.append(dict(stage=g, areg=2 + 2 * t, off=slot(g % NRING) + ks * 2048, step=512, acc=acc,
                                xn=XN + 16 * s + 4 * ks, c=(c0 or vr(acc, 16)) if first else vr(acc, 16), swap=swap,
                                need=need if first else None))
    return ops


def add(hooks, i, f):
    hooks.setdefault(i, []).append(f)


def bar_hook(p, bars, name, i, lg):
    def f():
        p.wait(lg=lg)
        p.e("s_barrier")
        bars.append((name, i))
    return f


def m_addr(p, col1):
    tr_lane_addr(p, 2, 10, 8, 0, True)
    tr_lane_addr(p, 4, 10, 8, col1, True)
    p.e(f"v_add_u32 v3, 0x10000, v2\nv_add_u32 v5, 0x10000, v4\nv_add_u32 v8, s{sM0W}, v1\nv_add_u32 v8, {HO}, v8")


def ho_off(blk):
    return (blk >> 1) * 8192 + (blk & 1) * 1024


def m_final(p):
    p.e(f"""v_lshrrev_b32 v10, 3, v0
v_and_b32 v11, 7, v0
v_lshlrev_b32 v12, 4, v11
v_mul_u32_u24 v13, 896, v10
v_add_u32 v13, v13, v12
s_lshl3_add_u32 s{sA}, s{sT}, s{sW}
s_mul_i32 s{sA}, s{sA}, {8*896}
s_lshl_b32 s{sB}, s{sI}, 7
s_add_u32 s{sA}, s{sA}, s{sB}
s_add_u32 s{sC}, s{sA}, {32*896}""")
    p.vmem(f"buffer_load_dwordx4 v[16:19], v13, {X}, s{sA} offen", "res")
    p.vmem(f"buffer_load_dwordx4 v[20:23], v13, {X}, s{sC} offen", "res")
    p.vmem(f"buffer_load_dwordx4 v[24:27], v12, {BIAS}, s{sB} offen", "res")
    p.e(f"""s_and_b32 s{sP}, s{sW}, 1
s_lshl_b32 s{sP}, s{sP}, 3
v_or_b32 v14, s{sP}, v10
v_lshlrev_b32 v15, 1, v11
v_xor_b32 v14, v14, v15
v_lshlrev_b32 v14, 4, v14
v_lshl_add_u32 v14, v10, 8, v14
s_lshl_b32 s{sP}, s{sW}, 13
s_add_u32 s{sP}, s{sP}, {slot(0)}
v_add_u32 v14, s{sP}, v14
v_xor_b32 v15, 16, v14
s_mov_b32 s{sK0}, {f32(1/GS):#x}""")
    p.wait(vm="res")
    for k in range(4):
        p.e(f"v_lshlrev_b32 v{28+2*k}, 16, v{24+k}\nv_and_b32 v{29+2*k}, 0xffff0000, v{24+k}")
    for it in range(2):
        for k in range(4):
            d = 36 + 8 * it + 2 * k
            p.e(f"v_lshlrev_b32 v{d}, 16, v{16+4*it+k}\nv_and_b32 v{d+1}, 0xffff0000, v{16+4*it+k}")
            p.e(f"v_add_f32 v{d}, v{d}, v{28+2*k}\nv_add_f32 v{d+1}, v{d+1}, v{29+2*k}")
    stamp(p, 7)
    p.e("s_barrier")
    stamp(p, 8)
    for it in range(2):
        for wp in range(4):
            for j in range(2):
                p.lds(f"ds_read_b128 {vr(64 + 32*it + 8*wp + 4*j, 4)}, v{14+j} offset:{it*32768 + wp*2048}", f"r{it}_{wp}")
    for it in range(2):
        b = 64 + 32 * it
        p.wait(lg=f"r{it}_1")
        for k in range(0, 8, 2):
            p.e(f"v_pk_add_f32 {vr(b+k,2)}, {vr(b+k,2)}, {vr(b+8+k,2)}")
        p.wait(lg=f"r{it}_3")
        for k in range(0, 8, 2):
            p.e(f"v_pk_add_f32 {vr(b+16+k,2)}, {vr(b+16+k,2)}, {vr(b+24+k,2)}")
        for k in range(0, 8, 2):
            p.e(f"v_pk_add_f32 {vr(b+k,2)}, {vr(b+k,2)}, {vr(b+16+k,2)}")
        for k in range(8):
            p.e(f"v_fma_f32 v{b+k}, v{b+k}, s{sK0}, v{36+8*it+k}")
        for k in range(4):
            p.e(f"v_cvt_pk_bf16_f32 v{b+8+k}, v{b+2*k}, v{b+2*k+1}")
        p.vmem(f"buffer_store_dwordx4 {vr(b+8,4)}, v13, {OUT}, s{sA if it == 0 else sC} offen", "out")
    finish(p)


def prog_MF(p):
    bars, hooks = [], {}
    m_addr(p, 64)
    tr_lane_addr(p, 6, 10, 8, 0, False)
    p.e("v_add_u32 v7, 0x10000, v6\nv_lshrrev_b32 v9, 5, v0\nv_lshlrev_b32 v9, 4, v9")

    def bias_rd(ps, blk):
        return lambda: p.lds(f"ds_read_b128 {vr(ACC[ps % 2] + 4*blk, 4)}, v9 offset:{(64*ps + 8*blk)*4}", f"bias{ps}")

    def ho_wr(ps, blk):
        return lambda: p.lds(f"ds_write_b128 v8, {vr(ACC[ps % 2] + 4*blk, 4)} offset:{ho_off(blk)}", f"ho{ps}")
    for blk in range(8):
        bias_rd(0, blk)()
    ops = []
    for ps in range(3):
        ops += full_pass_ops(ps, ps % 2, None, False, need=f"bias{ps}")
    acc = ACC[1]
    for s in range(7):
        g = 21 + s // 2
        for ks in range(4):
            ops.append(dict(stage=g, areg=6, off=slot(g % NRING) + ks * 2048 + (s & 1) * 1024, step=256, acc=acc,
                            xn=XN + 16 * s + 4 * ks, c=vr(acc, 16), swap=False, need="bias3" if s == 0 and ks == 0 else None))
    for ps in range(3):
        n = 56 * (ps + 1)
        for blk in range(8 if not OPT["no_ho"] else 0):
            add(hooks, n + 1 + blk // 2, ho_wr(ps, blk))
        add(hooks, n + 6, bar_hook(p, bars, f"ho{ps}", n + 6, f"ho{ps}"))
        for blk in range(8 if ps < 2 else 4):
            add(hooks, 56 * ps + 24 + blk, bias_rd(ps + 1, blk))
    if OPT["stamps"]:
        add(hooks, 55, lambda: stamp(p, 4))
    m_loop(p, ops, set(range(23)), hooks, bars)
    p.e("s_barrier")
    bars.append(("bG", len(ops)))
    stamp(p, 5)
    p.e(f"""s_mov_b32 s{sK0}, {f32(-GA/GS):#x}
s_lshl2_add_u32 s{sA}, s{sR}, s{sW}
s_mul_i32 s{sA}, s{sA}, 56
s_mul_i32 s{sB}, s{sU}, 7
s_add_u32 s{sA}, s{sA}, s{sB}
s_bitcmp1_b32 s{sU}, 0
s_cselect_b32 s{sB}, 0, 6
s_add_u32 s{sA}, s{sA}, s{sB}
s_lshl_b32 s{sA}, s{sA}, 11""")
    for txt, _, o in gelu_ops(acc, 16, MT, MT + 8):
        p.e(txt)
        if o is not None and o % 4 == 3:
            p.vmem(f"buffer_store_dwordx4 {vr(MT + 8 + o - 3, 4)}, v1, {WS}, s{sA} offen offset:{(o//4)*1024} sc1", "hst")
    p.wait(vm="hst")
    flag_store(p, 2, 3, 16)
    stamp(p, 6)
    m_final(p)
    return bars


def prog_MA(p):
    bars, hooks = [], {}
    m_addr(p, 56)
    EPS = 232
    for k in range(16):
        p.e(f"v_mov_b32 v{EPS+k}, {f32(1e-6):#x}")
    ops = full_pass_ops(0, 0, vr(EPS, 16), True) + full_pass_ops(1, 1, "0", True) + full_pass_ops(2, 0, vr(EPS, 16), False)
    for blk in range(8):
        add(hooks, 57 + blk // 2, (lambda b: lambda: p.lds(f"ds_write_b128 v8, {vr(ACC[0] + 4*b, 4)} offset:{ho_off(b)}", "hoK"))(blk))
    add(hooks, 62, bar_hook(p, bars, "hoK", 62, "hoK"))

    def v_wr(b):
        def f():
            for k in range(4):
                p.e(f"v_cvt_pk_bf16_f32 v{MT + 4*b + k}, v{ACC[1] + 8*b + 2*k}, v{ACC[1] + 8*b + 2*k + 1}")
            p.lds(f"ds_write_b128 v8, {vr(MT + 4*b, 4)} offset:{ho_off(4 + b)}", "hoV")
        return f
    for b in range(4):
        add(hooks, 113 + b, v_wr(b))
    add(hooks, 118, bar_hook(p, bars, "hoV", 118, "hoV"))
    gc = Gate(12, 13, DBG, "0", 0, 64)
    gz = Gate(14, 15, WS, f"s{sP}", 128, 1)
    ZF = ACC[1]

    def z_issue():
        p.e(f"""v_and_b32 v13, 3, v0
v_lshlrev_b32 v13, 6, v13
v_and_b32 v15, 15, v0
v_lshlrev_b32 v15, 12, v15
v_bfe_u32 v14, v0, 4, 1
v_lshl_add_u32 v15, v14, 2, v15
s_lshl_b32 s{sP}, s{sU}, 9
s_add_u32 s{sP}, s{sP}, {FLAG_OFF + 128*512 + 8:#x}""")
        gc.issue(p)
    add(hooks, 125, z_issue)
    add(hooks, 150, lambda: (gc.check(p), gz.issue(p)))
    if OPT["stamps"]:
        add(hooks, 55, lambda: stamp(p, 4))
    m_loop(p, ops, set(range(16)), hooks, bars)
    p.e("s_barrier")
    bars.append(("bG", len(ops)))
    stamp(p, 5)
    p.e(f"""v_and_b32 v10, 31, v0
v_lshlrev_b32 v11, 6, v10
v_lshrrev_b32 v13, 5, v0
v_lshl_add_u32 v11, v13, 4, v11
v_mov_b32 v13, 0x7f000000
v_cmp_gt_u32 vcc, 16, v10
v_cndmask_b32 v11, v13, v11, vcc
s_lshl_b32 s{sP+1}, s{sU}, 11
s_add_u32 s{sP+1}, s{sP+1}, {Z_OFF:#x}""")
    gz.check(p)
    for hh in range(2):
        for ks in range(2):
            p.vmem(f"buffer_load_dwordx4 {vr(ZF + 8*hh + 4*ks, 4)}, v11, {WS}, s{sP+1} offen offset:{hh*1024 + ks*32} sc1", "z")
    Q = ACC[0]
    phi_consts(p, MT)
    for txt, _, _ in phi_ops(Q, 32, MT):
        p.e(txt)
    p.e("s_mov_b32 exec_lo, 0")
    for hh in range(2):
        for k in range(4):
            p.e(f"v_mov_b32 v{Q + 16*hh + 12 + k}, 0")
    p.e("s_mov_b32 exec_lo, -1")
    PB, DN = ZF + 16, 16
    for k in range(16):
        p.e(f"v_cvt_pk_bf16_f32 v{PB+k}, v{Q+2*k}, v{Q+2*k+1}")
    p.wait(vm="z")
    for ks in range(2):
        for hh in range(2):
            d = DN + 16 * hh
            p.e(mfma(d, ZF + 8 * hh + 4 * ks, PB + 8 * hh + 4 * ks, "0" if ks == 0 else vr(d, 16)))
    p.e(f"""s_lshl2_add_u32 s{sA}, s{sR}, s{sW}
s_lshl3_add_u32 s{sA}, s{sA}, s{sU}
s_lshl_b32 s{sA}, s{sA}, 12
s_add_u32 s{sA}, s{sA}, {PQ_OFF:#x}""")
    for w in (4, 2, 1):
        for k in range(w):
            for hh in range(2):
                d = DN + 16 * hh
                p.e(f"v_add_f32 v{d+k}, v{d+k}, v{d+k+w}")
    for hh in range(2):
        p.e(f"v_mov_b32 v{DN+16*hh+1}, v{DN+16*hh}")
    for hh in range(2):
        p.e(f"v_permlane32_swap_b32 v{DN+16*hh}, v{DN+16*hh+1}")
    for step in (lambda d: f"v_add_f32 v{d}, v{d}, v{d+1}", lambda d: f"v_add_f32 v{d}, s{sK1}, v{d}",
                 lambda d: f"v_rcp_f32 v{d}, v{d}", lambda d: f"v_mul_f32 v{d}, {f32(GS):#x}, v{d}"):
        for hh in range(2):
            p.e(step(DN + 16 * hh))
    for b in range(4):
        for k in range(8):
            p.e(f"v_mul_f32 v{Q+8*b+k}, v{DN + 16*(b//2)}, v{Q+8*b+k}")
        for k in range(4):
            p.e(f"v_cvt_pk_bf16_f32 v{PB+4*b+k}, v{Q+8*b+2*k}, v{Q+8*b+2*k+1}")
        p.vmem(f"buffer_store_dwordx4 {vr(PB+4*b,4)}, v1, {WS}, s{sA} offen offset:{b*1024} sc1", "pq")
    p.wait(vm="pq")
    flag_store(p, 2, 1, 0)
    stamp(p, 6)
    p.e(f"s_cmp_lg_u32 s{sI}, 7\ns_cbranch_scc1 L_MA_fin")
    finish(p)
    p.label("L_MA_fin")
    m_final(p)
    return bars


VW0, VW1, VWH, VB0, VB1, VHO = 2, 3, 4, 5, 6, 7
VTR = 8
VL = 248
P2ACC, P2W = 16, 80
GIN, GOUT, GT = 160, 192, 208
sCOL, sCB = 76, 77
P2_TILES = [0, 1, 8, 9, 2, 3, 10, 11, 4, 5, 12, 13, 6, 7]


def h_common(p):
    p.e(f"""v_and_b32 v10, 7, v0
v_bfe_u32 v11, v0, 4, 1
v_lshlrev_b32 v11, 2, v11
v_xor_b32 v14, v10, v11
v_lshrrev_b32 v15, 3, v0
s_waitcnt lgkmcnt(0)""")
    srd(p, 20, 56, WS_SZ)
    srd(p, 28, 54, 256)
    srd(p, 32, 46, 3584)
    skip = uid("noclr")
    p.e(f"""s_cmp_lg_u32 s{sW}, 0
s_cbranch_scc1 {skip}
v_mov_b32 v16, 0
v_mov_b32 v17, 0
v_mov_b32 v18, 0
v_mov_b32 v19, 0
v_mov_b32 v20, 1
v_mov_b32 v21, {CNT_OFF}
s_mov_b32 exec_hi, 0
buffer_store_dwordx4 v[16:19], v1, {WS}, s{sFLAG} offen sc1
ds_write_b32 v21, v16
s_and_b32 s{sA}, s2, 3
s_lshl_b32 s{sA}, s{sA}, 6
s_mov_b32 exec_lo, 1
s_waitcnt vmcnt(0) lgkmcnt(0)
buffer_atomic_add v20, off, {DBG}, s{sA} sc1
s_mov_b64 exec, -1""")
    p.label(skip)
    if OPT["codepf"]:
        skip = uid("nopf")
        p.e(f"""s_cmp_lt_u32 s{sW}, 2
s_cbranch_scc1 {skip}
s_getpc_b64 s[78:79]""")
        p.label("L_pc")
        p.e(f"""s_sub_u32 s78, s78, L_pc-{NAME}_kernel
s_subb_u32 s79, s79, 0
s_lshr_b32 s{sA}, s2, 3
s_lshl1_add_u32 s{sA}, s{sA}, s{sW}
s_sub_u32 s{sA}, s{sA}, 2
s_lshl_b32 s{sA}, s{sA}, 10
s_min_u32 s{sA}, s{sA}, L_end-{NAME}_kernel-1024
v_add_u32 v16, s{sA}, v1
global_load_dwordx4 v[244:247], v16, s[78:79]""")
        p.label(skip)
    p.e(f"v_add_u32 v{VHO}, s{sM0W}, v1\nv_add_u32 v{VHO}, {HO}, v{VHO}")
    for t in range(2):
        tr_lane_addr(p, VTR + 3 * t, 16, 4, 64 * t, True)
        p.e(f"v_add_u32 v{VTR+3*t}, s{sM0W}, v{VTR+3*t}")
        p.e(f"v_add_u32 v{VTR+3*t+1}, 0x10000, v{VTR+3*t}\nv_add_u32 v{VTR+3*t+2}, 0x20000, v{VTR+3*t}")


def w_lane(p, v0_, v1_, pitch, srow, cap):
    if cap:
        p.e("v_min_u32 v16, 6, v14")
    else:
        p.e("v_mov_b32 v16, v14")
    p.e(f"v_add_u32 v17, s{srow}, v15\nv_mul_u32_u24 v17, {pitch}, v17\nv_lshl_add_u32 v{v0_}, v16, 4, v17")
    p.e(f"v_add_u32 v{v1_}, {8*pitch - 1024}, v{v0_}")


class Stream:
    def __init__(self, p, G, issue1, nB, issue2):
        self.p, self.G, self.issue1, self.nB, self.issue2 = p, G, issue1, nB, issue2
        self.next = 0
        self.freed = -1
        self.xfree = False
        self.free = []
        self.slot2 = {}

    def release(self, g):
        for k in range(self.freed + 1, min(g, self.G - 1) + 1):
            if k + NRING >= self.G:
                self.free.append(k % NRING)
        self.freed = max(self.freed, g)

    def can(self):
        g = self.next
        if g < self.G:
            return (g < 5) or (self.xfree and g - NRING <= self.freed)
        return g - self.G < self.nB and bool(self.free)

    def issue(self, n=99):
        k = 0
        while k < n and self.can():
            g = self.next
            if g < self.G:
                self.issue1(g, slot(g % NRING))
            else:
                s = self.free.pop(0)
                self.slot2[g - self.G] = s
                self.issue2(g - self.G, slot(s))
            self.next += 1
            k += 1
        return k


def dma_pair(p, rs, va, vb, base, tag):
    p.e(f"s_add_u32 m0, s{sM0W}, {base}")
    p.vmem(f"buffer_load_dwordx4 v{va}, {rs}, s{sA} offen lds", tag)
    p.vmem(f"buffer_load_dwordx4 v{vb}, {rs}, s{sA} offen offset:1024 lds", tag)


def w2_issue(p):
    def f(kk, base):
        row = P2_TILES[kk // 2] * 32 + (kk & 1) * 16
        p.e(f"s_add_u32 s{sA}, s{sCB}, {row*896}")
        dma_pair(p, WB, VB0, VB1, base, f"B{kk}")
    return f


def w2_setup(p):
    srd(p, 16, 48, 1792 * 896)
    p.e(f"s_mul_i32 s{sC}, s{sW}, 448\ns_lshl_b32 s{sCB}, s{sI}, 7")
    w_lane(p, VB0, VB1, 896, sC, False)


def h_phase1(p, st, bars, covers, work_after, fill):
    p.e("s_barrier")
    st.issue(5)
    stamp(p, 1)
    p.wait_all(lg=True)
    p.e("s_barrier")
    st.xfree = True
    st.issue(fill)
    for k, (name, idx) in enumerate(bars):
        c = covers(name)
        if c is not None:
            assert st.next > c, (name, c, st.next)
            p.wait(vm=f"A{c}")
        barrier(p, name)
        if name == "bG":
            st.release(st.G - 1)
            return
        if name[0] == "b":
            st.release(int(name[1:]) - 2)
        work_after(name, bars[k + 1][1] - idx)


class Slicer:
    def __init__(self, p):
        self.p, self.q, self.rate, self.credit = p, [], 0.0, 0.0

    def load(self, items, span):
        assert not self.q, "previous slice not drained"
        self.q = list(items)
        self.rate = sum(c for _, c in items) / span
        self.credit = 0.0

    def run(self, dm):
        self.credit += self.rate * dm + 1e-6
        while self.q and self.q[0][1] <= self.credit:
            f, c = self.q.pop(0)
            self.credit -= c
            f()

    def drain(self):
        while self.q:
            self.q.pop(0)[0]()


def ho_read(p):
    for blk in range(8):
        p.lds(f"ds_read_b128 {vr(GIN + 4*blk, 4)}, v{VHO} offset:{ho_off(blk)}", f"hi{blk}")


def with_waits(p, ops, per):
    items = []
    for k, (txt, c, o) in enumerate(ops):
        def f(txt=txt, k=k):
            if k % per == 0:
                p.wait(lg=f"hi{k // per}")
            p.e(txt)
        items.append((f, c, o))
    return items


def phase2(p, st, hooks):
    L = OPT["p2la"]
    sH, sQ, sMM, sF, sG = sP, sP + 2, sP + 4, sP + 6, sP + 8
    for m in range(7):
        p.e(f"v_add_u32 v{VL+m}, {4096*m}, v1")
    p.e(f"""s_mul_i32 s{sH}, s{sT}, {2*56*2048}
s_mul_i32 s{sA}, s{sW}, {14*2048}
s_add_u32 s{sH}, s{sH}, s{sA}
s_add_u32 s{sH+1}, s{sH}, {56*2048}
s_lshl3_add_u32 s{sQ}, s{sT}, s{sW}
s_lshl_b32 s{sQ}, s{sQ}, 13
s_add_u32 s{sQ}, s{sQ}, {PQ_OFF:#x}
s_add_u32 s{sQ+1}, s{sQ}, {16*2048}
s_lshl3_add_u32 s{sMM}, s{sI}, s{sW}
s_lshl_b32 s{sMM}, s{sMM}, 13
s_add_u32 s{sMM}, s{sMM}, {M_OFF:#x}
s_add_u32 s{sMM+1}, s{sMM}, {16*2048}
s_lshr_b32 s{sA}, s{sT}, 1
s_lshl2_add_u32 s{sA}, s{sA}, s{sW}
s_lshl_b32 s{sA}, s{sA}, 10
s_and_b32 s{sB}, s{sT}, 1
s_lshl3_add_u32 s{sA}, s{sB}, s{sA}
s_add_u32 s{sF}, s{sA}, {FLAG_OFF:#x}
s_add_u32 s{sF+1}, s{sF}, {128*512}
s_lshl_b32 s{sA}, s{sW}, 14
s_lshr_b32 s{sB}, s{sI}, 1
s_lshl2_add_u32 s{sA}, s{sB}, s{sA}
s_add_u32 s{sG}, s{sA}, {FLAG_OFF + 131*512:#x}
v_and_b32 v2, 1, v0
v_lshlrev_b32 v2, 9, v2
v_and_b32 v3, 2, v0
v_lshl_add_u32 v2, v3, 1, v2
v_and_b32 v3, 3, v0
v_lshlrev_b32 v4, 6, v3
v_lshlrev_b32 v3, 12, v3
v_and_b32 v14, 4, v0
v_lshl_add_u32 v3, v14, 9, v3""")
    gc = Gate(14, 4, DBG, "0", 0, 64)
    gates = {0: [Gate(14, 2, WS, f"s{sF}", 0, 1)], 8: [Gate(14, 2, WS, f"s{sF}", 0, 2)], 16: [Gate(14, 2, WS, f"s{sF}", 0, 3)],
             24: [Gate(14, 2, WS, f"s{sF}", 16, 3)],
             28: [Gate(15, 2, WS, f"s{sF+1}", 0, 1), Gate(255, 3, WS, f"s{sG}", 384, 1)]}
    free = list(range(96, 248, 4))
    regs = {}

    def loads(kk):
        for g in gates.get(kk, []):
            g.check(p)
        if kk < 28:
            o = P2_TILES[kk // 2] * 2048 + (kk & 1) * 1024
            src = [sH, sH + 1]
        else:
            o = (kk - 28) * 1024
            src = [sQ, sQ + 1, sMM, sMM + 1]
        regs[kk] = []
        for s in src:
            r = free.pop(0)
            regs[kk].append(r)
            p.vmem(f"buffer_load_dwordx4 {vr(r,4)}, v{VL + (o >> 12)}, {WS}, s{s} offen offset:{o & 4095} sc1", f"h{kk}")
        for g in gates.get(kk + 4, []):
            g.issue(p)

    def wread(kk):
        p.wait(vm=f"B{kk}")
        base = slot(st.slot2[kk])
        for t in range(2):
            f = P2W + 8 * (kk & 1) + 4 * t
            a = VTR + 3 * t + (base >> 16)
            p.lds(f"ds_read_b64_tr_b16 {vr(f,2)}, v{a} offset:{base & 0xFFFF}", f"w{kk}")
            p.lds(f"ds_read_b64_tr_b16 {vr(f+2,2)}, v{a} offset:{(base & 0xFFFF) + 1024}", f"w{kk}")
    gc.issue(p)
    st.issue(4)
    gc.check(p)
    gates[0][0].issue(p)
    st.issue(4)
    stamp(p, 4)
    for kk in range(L):
        loads(kk)
    wread(0)
    stamp(p, 5)
    for kk in range(36):
        p.wait(vm=f"h{kk}", lg=f"w{kk}")
        if kk < 28:
            st.free.append(st.slot2[kk])
            A = [P2W + 8 * (kk & 1), P2W + 8 * (kk & 1) + 4]
        else:
            A = regs[kk][2:]
        B = regs[kk][:2]
        k = 0
        for nt in range(2):
            for tt in range(2):
                d = P2ACC + 32 * nt + 16 * tt
                p.e(mfma(d, A[nt], B[tt], "0" if kk == 0 else vr(d, 16)))
                if k == 0 and kk + 1 < 28:
                    wread(kk + 1)
                if k == 1 and kk + L < 36:
                    loads(kk + L)
                if k == 2:
                    st.issue(2)
                k += 1
        free += regs[kk]
        for h in hooks.get(kk, []):
            h()
        if kk == 27:
            stamp(p, 6)
    stamp(p, 7)
    p.e(f"""v_and_b32 v2, 31, v0
v_lshrrev_b32 v3, 5, v0
v_and_b32 v4, 15, v0
v_xor_b32 v3, v3, v4
v_lshlrev_b32 v3, 4, v3
v_and_b32 v4, 7, v0
v_lshl_add_u32 v3, v4, 8, v3
v_lshrrev_b32 v2, 3, v2
v_lshl_add_u32 v3, v2, 13, v3
s_add_u32 s{sA}, s{sM0W}, {slot(0)}
v_add_u32 v3, s{sA}, v3""")
    for nt in range(2):
        for q in range(4):
            p.e(f"v_xor_b32 v{4 + 4*nt + q}, {(8*nt + 2*q) << 4}, v3")
    for nt in range(2):
        for tt in range(2):
            for q in range(4):
                p.lds(f"ds_write_b128 v{4 + 4*nt + q}, {vr(P2ACC + 32*nt + 16*tt + 4*q, 4)} offset:{tt*32768}")
    p.wait_all(lg=True)
    stamp(p, 8)
    p.e("s_barrier")
    finish(p)


def prog_HF(p, bars):
    srd(p, 12, 44, 448 * 3584)
    w2_setup(p)
    p.e(f"s_lshl_b32 s{sC}, s{sW}, 4")
    w_lane(p, VW0, VW1, 3584, sC, False)
    p.e(f"""v_lshrrev_b32 v16, 2, v0
v_add_u32 v16, s{sC}, v16
v_mul_u32_u24 v16, 3584, v16
v_and_b32 v17, 3, v0
v_lshl_add_u32 v{VWH}, v17, 4, v16
s_mul_i32 s{sC}, s{sU}, 448
s_and_b32 s{sP}, s{sU}, 1
s_lshl_b32 s{sA}, s{sP}, 6
s_add_u32 s{sC}, s{sC}, s{sA}""")
    kl_table(p, 64 * 3584, sC)
    p.e(f"s_mul_i32 s{sCOL}, s{sP}, 448\ns_sub_u32 s{sCOL}, 384, s{sCOL}")
    skip = uid("nobias")
    p.e(f"""s_cmp_lg_u32 s{sW}, 1
s_cbranch_scc1 {skip}
s_lshl_b32 s{sA}, s{sP}, 3
v_add_u32 v16, s{sA}, v0
v_subrev_u32 v17, 56, v16
v_min_u32 v16, v16, v17
v_lshlrev_b32 v16, 3, v16
s_mul_i32 s{sA}, s{sU}, 448
buffer_load_dwordx2 v[18:19], v16, {BIAS}, s{sA} offen
s_mov_b32 s{sB}, {f32(GS):#x}
s_waitcnt vmcnt(0)
v_lshlrev_b32 v20, 16, v18
v_and_b32 v21, 0xffff0000, v18
v_lshlrev_b32 v22, 16, v19
v_and_b32 v23, 0xffff0000, v19
v_mul_f32 v20, s{sB}, v20
v_mul_f32 v21, s{sB}, v21
v_mul_f32 v22, s{sB}, v22
v_mul_f32 v23, s{sB}, v23
ds_write_b128 v1, v[20:23]
s_waitcnt lgkmcnt(0)""")
    p.label(skip)
    sHS = sP + 10
    p.e(f"""s_mov_b32 s{sK0}, {f32(-GA/GS):#x}
s_lshl2_add_u32 s{sHS}, s{sR}, s{sW}
s_mul_i32 s{sHS}, s{sHS}, 56
s_mul_i32 s{sB}, s{sU}, 7
s_add_u32 s{sHS}, s{sHS}, s{sB}
s_add_u32 s{sHS}, s{sHS}, s{sP}
s_lshl_b32 s{sHS}, s{sHS}, 11
s_add_u32 s{sHS+1}, s{sHS}, 4096
s_add_u32 s{sHS+2}, s{sHS}, 8192""")

    def issue1(g, base):
        if g < 21:
            p.e(f"s_add_u32 s{sA}, s{sKL + g % 7}, {128 * (g // 7)}")
            dma_pair(p, WA, VW0, VW1, base, f"A{g}")
        else:
            for i in range(2):
                s = 2 * (g - 21) + i
                if s < 7:
                    p.e(f"s_add_u32 s{sA}, s{sKL + s}, s{sCOL}\ns_add_u32 m0, s{sM0W}, {base + 1024*i}")
                    p.vmem(f"buffer_load_dwordx4 v{VWH}, {WA}, s{sA} offen lds", f"A{g}")
    st = Stream(p, 25, issue1, 28, w2_issue(p))
    sl = Slicer(p)
    idx = dict(bars)

    def gelu_items(ps):
        items = []
        for f, c, o in with_waits(p, gelu_ops(GIN, 32, GT, GOUT), 26):
            items.append((f if not OPT["no_gelu"] else (lambda: None), c))
            if o is not None and o % 4 == 3 and not OPT["no_hst"]:
                items.append((lambda o=o: p.vmem(
                    f"buffer_store_dwordx4 {vr(GOUT + o - 3, 4)}, v1, {WS}, s{sHS+ps} offen offset:{(o//4)*1024} sc1", f"hs{ps}"), 8))
        return items

    def flag(ps):
        p.wait(vm=f"hs{ps}")
        flag_store(p, 15, ps + 1, 0)

    def covers(name):
        if name == "ho2":
            return 24
        return int(name[1:]) if name[0] == "b" and name != "bG" else None

    def work(name, dm):
        if name.startswith("ho"):
            ps = int(name[2:])
            sl.drain()
            ho_read(p)
            span = idx[f"ho{ps+1}"] - idx[name] if ps < 2 else 2 * (idx["bG"] - idx[name])
            sl.load(gelu_items(ps), span)
            if ps == 0:
                stamp(p, 2)
        else:
            st.issue(OPT["fill"])
        if name == "b19":
            flag(0)
        sl.run(dm)
    h_phase1(p, st, bars, covers, work, 4)
    flag(1)
    p.wait(lg="hi7")
    st.free = [15, 16, 17, 18] + st.free
    st.issue(2)
    sl.drain()
    stamp(p, 3)
    phase2(p, st, {0: [lambda: flag(2)]})


def prog_HA(p, bars, maker):
    srd(p, 12, 38, 448 * 2688)
    sHD = sP + 12
    if maker:
        srd(p, 16, 40, 448 * 896)
        p.e(f"""s_lshr_b32 s{sHD}, s{sT}, 1
s_mul_i32 s{sC}, s{sHD}, 28
s_lshl_b32 s{sCB}, s{sW}, 8""")
        w_lane(p, VB0, VB1, 896, sC, False)

        def issue2(kk, base):
            p.e(f"s_add_u32 s{sA}, s{sCB}, {(kk >> 1)*128 + (kk & 1)*16*896}")
            dma_pair(p, WB, VB0, VB1, base, f"B{kk}")
        nB = 4
    else:
        w2_setup(p)
        issue2, nB = w2_issue(p), 28
    p.e(f"s_lshl_b32 s{sC}, s{sW}, 4")
    w_lane(p, VW0, VW1, 2688, sC, True)
    p.e(f"s_mul_i32 s{sC}, s{sU}, 112")
    kl_table(p, 64 * 2688, sC)
    phi_consts(p, GT)
    PK, VV, DD, ONES = 96, 128, 16, 32
    sZ, sKV = sP + 10, sP + 11
    VRD, VKO = VWH, 15
    p.e(f"""s_and_b32 s{sA}, s{sW}, 1
s_lshl1_add_u32 s{sB}, s{sU}, s{sA}
s_lshl_b32 s{sA}, s{sA}, 13
s_add_u32 s{sA}, s{sA}, {HO}
v_add_u32 v{VRD}, s{sA}, v1
s_lshl4_add_u32 s{sZ}, s{sB}, s{sR}
s_lshl_b32 s{sZ}, s{sZ}, 6
s_add_u32 s{sZ}, s{sZ}, {Z_OFF:#x}
s_lshl_b32 s{sKV}, s{sB}, 5
s_add_u32 s{sKV}, s{sKV}, s{sR}
s_lshl_b32 s{sKV}, s{sKV}, 11
s_add_u32 s{sKV}, s{sKV}, {KV_OFF:#x}
v_lshrrev_b32 v16, 5, v0
v_lshlrev_b32 v14, 4, v16
v_and_b32 v17, 15, v0
v_add_u32 v17, v17, v14
v_lshlrev_b32 v17, 4, v17
v_bfe_u32 v16, v0, 4, 1
v_lshl_add_u32 v{VKO}, v16, 15, v17
v_lshl_add_u32 v255, v16, 11, v17""")
    for k in range(4):
        p.e(f"v_mov_b32 v{ONES+k}, 0x3f803f80")

    def issue1(g, base):
        p.e(f"s_add_u32 s{sA}, s{sKL + g % 7}, {(896, 1792, 0)[g // 7]}")
        dma_pair(p, WA, VW0, VW1, base, f"A{g}")
    st = Stream(p, 21, issue1, nB, issue2)
    sl = Slicer(p)
    idx = dict(bars)

    def k_items():
        items = []
        ops = with_waits(p, phi_ops(GIN, 32, GT), 16)
        for b in range(4):
            items += [(f, c) for f, c, _ in ops[32 * b:32 * b + 32]]
            for k in range(4):
                items.append((lambda b=b, k=k: p.e(f"v_cvt_pk_bf16_f32 v{GOUT+4*b+k}, v{GIN+8*b+2*k}, v{GIN+8*b+2*k+1}"), 4))
        for b in range(4):
            items.append((lambda b=b: p.lds(f"ds_write_b128 v{VHO}, {vr(GOUT+4*b,4)} offset:{ho_off(b)}", "pk"), 4))
        items.append((lambda: p.wait_all(lg=True), 4))
        return items

    def covers(name):
        if name == "hoV":
            return 20
        return int(name[1:]) if name[0] == "b" and name != "bG" else None

    def chain(a_of, b_of):
        for j in range(8):
            p.e(mfma(DD, a_of(j), b_of(j), "0" if j == 0 else vr(DD, 16)))

    def work(name, dm):
        if name == "hoK":
            ho_read(p)
            sl.load(k_items(), idx["b13"] - idx["hoK"])
            stamp(p, 2)
        elif name == "b13":
            assert not sl.q
            for j in range(8):
                p.lds(f"ds_read_b128 {vr(PK+4*j,4)}, v{VRD} offset:{j*1024}", "pkr")
            st.issue(2)
            p.wait_all(lg=True)
            skip = uid("noz")
            p.e(f"s_cmp_lt_u32 s{sW}, 2\ns_cbranch_scc1 {skip}")
            chain(lambda j: PK + 4 * j, lambda j: ONES)
            for k in range(8):
                p.e(f"v_cvt_pk_bf16_f32 v{GOUT+k}, v{DD+2*k}, v{DD+2*k+1}")
            p.e("s_mov_b32 exec_lo, 1\ns_mov_b32 exec_hi, 1")
            for ks in range(2):
                p.vmem(f"buffer_store_dwordx4 {vr(GOUT+4*ks,4)}, v14, {WS}, s{sZ} offen offset:{32*ks} sc1", "zs", ghost=True)
            p.e("s_mov_b64 exec, -1")
            p.label(skip)
        elif name == "hoV":
            zpath, done = uid("zf"), uid("kvdone")
            p.e(f"s_cmp_ge_u32 s{sW}, 2\ns_cbranch_scc1 {zpath}")
            for j in range(8):
                p.lds(f"ds_read_b128 {vr(VV+4*j,4)}, v{VRD} offset:{16384 + j*1024}", f"vr{j}")
            p.e("s_setprio 2")
            for j in range(8):
                p.wait(lg=f"vr{j}")
                p.e(mfma(DD, VV + 4 * j, PK + 4 * j, "0" if j == 0 else vr(DD, 16)))
            for q in range(4):
                p.vmem(f"buffer_store_dwordx4 {vr(DD+4*q,4)}, v{VKO}, {WS}, s{sKV} offen offset:{512*q} sc1", "kvs", ghost=True)
            p.e("s_setprio 0")
            p.wait(vm="kvs", keep=True)
            flag_store(p, GT + 6, 1, 256, ghost=True)
            p.e(f"s_branch {done}")
            p.label(zpath)
            p.wait(vm="zs", keep=True)
            flag_store(p, GT + 6, 1, 128, ghost=True)
            p.label(done)
            stamp(p, 3)
        else:
            st.issue(2)
        sl.run(dm)
    h_phase1(p, st, bars, covers, work, 4)
    if not maker:
        st.free = [15, 16, 17, 18] + st.free
        phase2(p, st, {})
        return
    WO, KI, RI, KB = 32, 96, 128, 64
    p.wait(vm="B3")
    for kk in range(4):
        base = slot(st.slot2[kk])
        for t in range(2):
            f = WO + 8 * kk + 4 * t
            a = VTR + 3 * t + (base >> 16)
            p.lds(f"ds_read_b64_tr_b16 {vr(f,2)}, v{a} offset:{base & 0xFFFF}")
            p.lds(f"ds_read_b64_tr_b16 {vr(f+2,2)}, v{a} offset:{(base & 0xFFFF) + 1024}")
    p.e(f"""v_and_b32 v2, 3, v0
v_lshlrev_b32 v4, 6, v2
v_lshlrev_b32 v2, 12, v2
s_lshr_b32 s{sA}, s{sHD}, 1
s_lshl_b32 s{sB}, s{sW}, 5
s_add_u32 s{sA}, s{sA}, s{sB}
s_lshl_b32 s{sA}, s{sA}, 9
s_and_b32 s{sB}, s{sHD}, 1
s_lshl2_add_u32 s{sA}, s{sB}, s{sA}
s_add_u32 s{sP}, s{sA}, {FLAG_OFF + 128*512:#x}
s_lshl2_add_u32 s{sA}, s{sT}, s{sW}
s_lshl_b32 s{sA}, s{sA}, 13
s_add_u32 s{sP+1}, s{sA}, {KV_OFF:#x}
s_add_u32 s{sP+2}, s{sP+1}, 4096
s_lshl_b32 s{sA}, s{sW}, 7
s_add_u32 s{sA}, s{sA}, s{sT}
s_lshl_b32 s{sA}, s{sA}, 10
s_add_u32 s{sP+3}, s{sA}, {M_OFF:#x}
v_add_u32 v5, {slot(10)}, v1
v_add_u32 v6, s{sM0W}, v5
v_mov_b32 v7, {CNT_OFF}
v_mov_b32 v3, 1""")
    gc = Gate(14, 4, DBG, "0", 0, 64)
    gk = Gate(14, 2, WS, f"s{sP}", 256, 1)
    gc.issue(p)
    gc.check(p)
    gk.issue(p)
    gk.check(p)
    stamp(p, 4)
    for pr in range(2):
        for q in range(4):
            p.vmem(f"buffer_load_dwordx4 {vr(KI + 16*pr + 4*q, 4)}, v255, {WS}, s{sP+1+pr} offen offset:{512*q} sc1", f"ki{pr}{q}")
    for q in range(4):
        p.wait(vm=f"ki1{q}")
        for k in range(0, 4, 2):
            p.e(f"v_pk_add_f32 {vr(KI+4*q+k,2)}, {vr(KI+4*q+k,2)}, {vr(KI+16+4*q+k,2)}")
        p.lds(f"ds_write_b128 v6, {vr(KI+4*q,4)} offset:{ho_off(q)}")
    p.wait_all(lg=True)
    again, ok = uid("lagain"), uid("lok")
    p.e("s_mov_b64 exec, 1\nds_add_u32 v7, v3\ns_mov_b64 exec, -1")
    p.label(again)
    p.e(f"""ds_read_b32 v14, v7
s_waitcnt lgkmcnt(0)
v_cmp_le_u32 vcc, 4, v14
s_cmp_eq_u64 vcc, exec
s_cbranch_scc1 {ok}
s_cmp_eq_u32 s{sSPIN}, 0
s_cbranch_scc1 {ok}
s_sub_u32 s{sSPIN}, s{sSPIN}, 1
s_branch {again}""")
    p.label(ok)
    stamp(p, 5)
    for q in range(4):
        for wp in range(4):
            p.lds(f"ds_read_b128 {vr(RI + 16*q + 4*wp, 4)}, v5 offset:{ho_off(q) + wp*2048}", f"ri{q}")
    for q in range(4):
        b = RI + 16 * q
        p.wait(lg=f"ri{q}")
        for (x, y) in ((0, 4), (8, 12), (0, 8)):
            for k in range(0, 4, 2):
                p.e(f"v_pk_add_f32 {vr(b+x+k,2)}, {vr(b+x+k,2)}, {vr(b+y+k,2)}")
        for k in range(2):
            p.e(f"v_cvt_pk_bf16_f32 v{KB+2*q+k}, v{b+2*k}, v{b+2*k+1}")
    p.e(f"s_mov_b32 exec_lo, 0\nv_mov_b32 v{KB+6}, 0\nv_mov_b32 v{KB+7}, 0\ns_mov_b32 exec_lo, -1\ns_nop 3")
    MD = 128
    for ks in range(2):
        for cb in range(2):
            for t in range(2):
                d = MD + 32 * cb + 16 * t
                p.e(mfma(d, KB + 4 * ks, WO + 8 * (2 * cb + ks) + 4 * t, "0" if ks == 0 else vr(d, 16)))
    last = uid("mlast")
    for cb in range(2):
        if cb == 1:
            p.e(f"s_cmp_eq_u32 s{sW}, 3\ns_cbranch_scc1 {last}")
        for t in range(2):
            d = MD + 32 * cb + 16 * t
            for k in range(8):
                p.e(f"v_add_f32 v{d+k}, v{d+k}, v{d+8+k}")
            for k in range(4):
                p.e(f"v_cvt_pk_bf16_f32 v{d+8+k}, v{d+2*k}, v{d+2*k+1}")
            p.e(f"s_add_u32 s{sA}, s{sP+3}, {(2*cb + t)*32768}")
            p.vmem(f"buffer_store_dwordx4 {vr(d+8,4)}, v1, {WS}, s{sA} offen sc1", "ms")
    p.label(last)
    stamp(p, 6)
    p.wait_all(vm=True)
    flag_store(p, 14, 1, 384)
    finish(p)


def build():
    top = Prog()
    prologue(top)
    m_common(top)
    top.e(f"s_cmp_ge_u32 s{sI}, 4\ns_cbranch_scc1 L_MA")
    mf, ma = Prog(), Prog()
    barsF = prog_MF(mf)
    ma.label("L_MA")
    barsA = prog_MA(ma)
    h = Prog()
    h.label("L_H")
    h_common(h)
    h.e(f"s_cmp_eq_u32 s{sI}, 7\ns_cbranch_scc1 L_HM\ns_cmp_ge_u32 s{sI}, 4\ns_cbranch_scc1 L_HA")
    hf, ha, hm = Prog(), Prog(), Prog()
    prog_HF(hf, barsF)
    ha.label("L_HA")
    prog_HA(ha, barsA, False)
    hm.label("L_HM")
    prog_HA(hm, barsA, True)
    lines = top.lines + mf.lines + ma.lines + h.lines + hf.lines + ha.lines + hm.lines + ["L_end:", "s_endpgm"]
    lines, npad = pad(lines)
    head = open(f"cdna_kernels/{NAME}.s.ref").read().split("; Override launch")[0]
    txt = head + "; @launch grid=(256,1,1) block=(512,1,1) lds=163840\n"
    txt += f""".amdgcn_target "amdgcn-amd-amdhsa--gfx950"
.text
.globl {NAME}_kernel
.p2align 8
.type {NAME}_kernel,@function
{NAME}_kernel:
"""
    txt += "\n".join(l if l.endswith(":") else "    " + l for l in lines) + "\n"
    txt += f""".section .rodata,"a"
.p2align 6
.amdhsa_kernel {NAME}_kernel
  .amdhsa_next_free_vgpr 256
  .amdhsa_next_free_sgpr 102
  .amdhsa_accum_offset 256
  .amdhsa_group_segment_fixed_size 0
  .amdhsa_kernarg_size 88
  .amdhsa_user_sgpr_count 2
  .amdhsa_user_sgpr_kernarg_segment_ptr 1
  .amdhsa_system_sgpr_workgroup_id_x 1
.end_amdhsa_kernel
"""
    return txt, npad, (barsF, barsA)


if __name__ == "__main__":
    out = sys.argv[1]
    for a in sys.argv[2:]:
        k, v = a.split("=")
        assert k in OPT, k
        OPT[k] = int(v)
    txt, npad, bars = build()
    open(out, "w").write(txt)
    print(f"wrote {out}: {txt.count(chr(10))} lines, {npad} pads")
```
